```python
import torch

def _softmax(x, axis=-1):
    return torch.softmax(x, dim=axis)
def _gelu(x):
    return torch.nn.functional.gelu(x, approximate="tanh")
def _silu(x):
    return torch.nn.functional.silu(x)
def _sigmoid(x):
    return torch.sigmoid(x)
def _layernorm(x, axis=-1, eps=1e-5):
    m = x.mean(dim=axis, keepdim=True)
    v = x.var(dim=axis, keepdim=True, unbiased=False)
    return (x - m) / torch.sqrt(v + eps)
def _scatter_add(tgt, idx, src, axis=0):
    return tgt.clone().index_add_(axis, idx, src)
def _segment_sum(src, seg, n):
    out = torch.zeros((n,) + src.shape[1:], dtype=src.dtype)
    return out.index_add_(0, seg, src)
def _pad(x, pw):
    flat = tuple(v for pair in reversed(pw) for v in pair)
    return torch.nn.functional.pad(x, flat)

kernel_name = 'sequential_preLN__ssm_conv_s4d__dense_activation_squared_relu__prompt'

def setup_inputs():

    _w = (lambda a: (lambda t: t.to(torch.bfloat16) if t.is_floating_point() else t)(torch.as_tensor(a)))
    def _A_setup():
        Bsz, L, D, N = 1, 2048, 576, 128
        return {
            "u": _w((lambda *s: torch.randn(*s, dtype=torch.bfloat16) * 0.05)(Bsz, L, D)),
            "log_A_real": _w((lambda *s: torch.randn(*s, dtype=torch.bfloat16) * 3.2)(D, N) * 0.5),
            "A_imag": _w((lambda *s: torch.randn(*s, dtype=torch.bfloat16) * 0.05)(D, N) * 3.14),
            "C_real": _w((lambda *s: torch.randn(*s, dtype=torch.bfloat16) * 0.1)(D, N) / N ** 0.5),
            "C_imag": _w((lambda *s: torch.randn(*s, dtype=torch.bfloat16) * 0.1)(D, N) / N ** 0.5),
            "log_dt": _w((lambda *s: torch.randn(*s, dtype=torch.bfloat16) * 0.05)(D) * 0.5 - 4.0),
            "D_skip": _w((lambda *s: torch.randn(*s, dtype=torch.bfloat16) * 0.05)(D)),
        }
    _A_in = _A_setup()

    def _B_setup():
        B, S, D, F = 1, 2048, 576, 4608
        return {
            "x": _w((lambda *s: torch.randn(*s, dtype=torch.bfloat16) * 0.05)(B, S, D)),
            "w1": _w((lambda *s: torch.randn(*s, dtype=torch.bfloat16) * 0.05)(D, F)),
            "b1": _w((lambda *s: torch.randn(*s, dtype=torch.bfloat16) * 0.2)(F)),
            "w2": _w((lambda *s: torch.randn(*s, dtype=torch.bfloat16) * 0.05)(F, D)),
            "b2": _w((lambda *s: torch.randn(*s, dtype=torch.bfloat16) * 1.6)(D)),
        }
    _B_in = _B_setup()

    return {
        "A_u": _A_in["u"],
        "A_log_A_real": _A_in["log_A_real"],
        "A_A_imag": _A_in["A_imag"],
        "A_C_real": _A_in["C_real"],
        "A_C_imag": _A_in["C_imag"],
        "A_log_dt": _A_in["log_dt"],
        "A_D_skip": _A_in["D_skip"],
        "B_x": _B_in["x"],
        "B_w1": _B_in["w1"],
        "B_b1": _B_in["b1"],
        "B_w2": _B_in["w2"],
        "B_b2": _B_in["b2"],
    }

def reference(A_u, A_log_A_real, A_A_imag, A_C_real, A_C_imag, A_log_dt, A_D_skip, B_x, B_w1, B_b1, B_w2, B_b2):
    def _A_ref(u, log_A_real, A_imag, C_real, C_imag, log_dt, D_skip):
        L = u.shape[1]
        dt = torch.exp(log_dt)
        A = -torch.exp(log_A_real) + 1j * A_imag
        C = (C_real + 1j * C_imag) * dt[:, None]
        pos = (lambda x, dt: x.to(dt))(torch.arange(L), log_dt.dtype)
        P = torch.exp((A * dt[:, None])[:, :, None] * pos[None, None, :])
        K = 2.0 * torch.einsum("dn,dnl->dl", C, P).real
        L2 = 2 * L
        u_t = (lambda x, *d: x.permute(*d))(u, 0, 2, 1)
        Kf = (lambda x, *a, **k: torch.fft.rfft(x.float(), *a, **k))(K, L2)
        Uf = (lambda x, *a, **k: torch.fft.rfft(x.float(), *a, **k))(u_t, L2)
        y = (lambda x, *a, **k: torch.fft.irfft(x, *a, **k).to(torch.bfloat16))(Uf * Kf[None, :, :], L2)[:, :, :L]
        y = (lambda x, *d: x.permute(*d))(y, 0, 2, 1)
        return y + u * D_skip[None, None, :]

    def _B_ref(x, w1, b1, w2, b2):
        h = torch.einsum("bsd,df->bsf", x, w1) + b1
        zero = torch.zeros_like(h)
        r = torch.where(h > zero, h, zero)
        h = r * r
        out = torch.einsum("bsf,fd->bsd", h, w2) + b2
        return out

    x = A_u
    h = x + _A_ref(_layernorm(x, axis=-1), A_log_A_real, A_A_imag, A_C_real, A_C_imag, A_log_dt, A_D_skip)
    h2 = h + _B_ref(_layernorm(h, axis=-1), B_w1, B_b1, B_w2, B_b2)
    return h2
```

```python
import re

TRANS = ("v_exp_f32", "v_log_f32", "v_rcp_f32", "v_rsq_f32", "v_sqrt_f32", "v_sin_f32", "v_cos_f32", "v_rcp_iflag_f32")
REG_RE = re.compile(r"^(-|abs\(|\|)*([vsa])(?:(\d+)|\[(\d+):(\d+)\])(\)|\|)*$")

def regs_of(tok):
    tok = tok.strip()
    if tok in ("vcc",): return [("s", 106), ("s", 107)]
    if tok == "vcc_lo": return [("s", 106)]
    if tok == "vcc_hi": return [("s", 107)]
    if tok == "exec": return [("s", 126), ("s", 127)]
    if tok == "m0": return [("s", 124)]
    m = REG_RE.match(tok)
    if not m: return []
    f = m.group(2)
    if m.group(3) is not None: return [(f, int(m.group(3)))]
    return [(f, i) for i in range(int(m.group(4)), int(m.group(5)) + 1)]

class I:
    __slots__ = ("text", "op", "ops", "mods", "dst", "src", "kind", "passes", "srcA", "srcB", "srcC", "nstates")
    def __init__(self, text):
        self.text = text
        t = text.split(";")[0].strip()
        sp = t.split(None, 1)
        self.op = sp[0]
        rest = sp[1] if len(sp) > 1 else ""
        parts = [p.strip() for p in rest.split(",")] if rest else []
        ops = []; mods = []
        for k, p in enumerate(parts):
            w = p.split()
            if not w: continue
            ops.append(w[0]); mods += w[1:]
        self.ops = ops; self.mods = " ".join(mods) + " " + rest
        op = self.op
        base = re.sub(r"_(e32|e64|dpp|sdwa)$", "", op)
        R = [regs_of(o) for o in ops]
        flat = lambda xs: [r for x in xs for r in x]
        self.passes = 0; self.srcA = self.srcB = self.srcC = []
        self.nstates = 1
        dst = []; src = []
        if op == "s_nop":
            self.kind = "nop"; self.nstates = int(ops[0], 0) + 1
        elif op.startswith("v_mfma"):
            self.kind = "mfma"
            dst = R[0]; self.srcA, self.srcB, self.srcC = R[1], R[2], R[3]; src = flat(R[1:4])
            if "32x32x16" in op or "32x32x8" in op: self.passes = 8
            elif "16x16x32" in op or "16x16x16" in op: self.passes = 4
            elif "4x4x4" in op: self.passes = 2
            else: raise ValueError("unknown mfma " + op)
        elif op.startswith("v_"):
            self.kind = "valu"
            if base.startswith("v_cmp"):
                dst = R[0]; src = flat(R[1:])
                if base.startswith("v_cmpx"): dst = dst + regs_of("exec")
            elif base in ("v_readfirstlane_b32", "v_readlane_b32"):
                dst = R[0]; src = flat(R[1:])
            elif base in ("v_swap_b32", "v_permlane16_swap_b32", "v_permlane32_swap_b32"):
                dst = flat(R[:2]); src = flat(R[:2])
            elif base in ("v_add_co_u32", "v_sub_co_u32", "v_subrev_co_u32", "v_addc_co_u32", "v_subb_co_u32", "v_mad_u64_u32", "v_div_scale_f32"):
                dst = R[0] + R[1]; src = flat(R[2:])
            else:
                dst = R[0]; src = flat(R[1:])
                if base in ("v_fmac_f32", "v_dot2c_f32_bf16", "v_dot2c_f32_f16", "v_pk_fmac_f16", "v_writelane_b32", "v_fmac_f16") or "dpp" in op or "row_" in self.mods or "quad_perm" in self.mods or "dst_unused:UNUSED_PRESERVE" in self.mods:
                    src = src + R[0]
                if base == "v_nop": dst = []; src = []
        elif op.startswith("ds_"):
            self.kind = "ds"
            if op.startswith("ds_read") or op.startswith("ds_bpermute") or op.startswith("ds_permute") or op.startswith("ds_swizzle") or "_rtn" in op:
                dst = R[0]; src = flat(R[1:])
                if "d16" in op: src = src + R[0]
            else:
                src = flat(R)
        elif op.startswith("buffer_") or op.startswith("global_"):
            self.kind = "vmem"
            islds = (" lds" in " " + self.mods) or op.startswith("global_load_lds")
            if op.startswith("buffer_wbl2") or op.startswith("buffer_inv"):
                pass
            elif "_load" in op and not islds:
                dst = R[0]; src = flat(R[1:])
                if "d16" in op: src = src + R[0]
            elif "atomic" in op and " sc0" in " " + self.mods:
                dst = R[0]; src = flat(R)
            else:
                src = flat(R)
            if islds: src = src + regs_of("m0")
        elif op.startswith("s_load") or op.startswith("s_buffer_load") or op.startswith("s_memtime") or op.startswith("s_memrealtime") or op.startswith("s_atomic"):
            self.kind = "smem"; dst = R[0]; src = flat(R[1:])
        elif op.startswith("s_"):
            self.kind = "salu"
            if op.startswith(("s_cmp", "s_cbranch", "s_branch", "s_waitcnt", "s_barrier", "s_endpgm", "s_setprio", "s_sleep", "s_bitcmp", "s_setpc")):
                src = flat(R)
            else:
                dst = R[0] if R else []; src = flat(R[1:])
                if "saveexec" in op: dst = dst + regs_of("exec"); src = src + regs_of("exec")
                if op in ("s_addk_i32", "s_mulk_i32"): src = src + R[0]
        else:
            raise ValueError("unknown op: " + text)
        self.dst = set(dst); self.src = set(src)

def need(p, c):
    n = 0
    cb = re.sub(r"_(e32|e64|dpp|sdwa)$", "", c.op); pb = re.sub(r"_(e32|e64|dpp|sdwa)$", "", p.op)
    if p.kind == "valu":
        vd = {r for r in p.dst if r[0] != "s"}; sd = {r for r in p.dst if r[0] == "s"}
        if c.kind == "mfma" and vd & c.src: n = max(n, 2)
        if c.kind == "valu":
            if vd & c.src:
                if pb in TRANS and cb not in TRANS: n = max(n, 1)
                if cb in ("v_readfirstlane_b32", "v_readlane_b32"): n = max(n, 1)
                if cb.startswith("v_permlane"): n = max(n, 2)
                if "dpp" in c.op or "row_" in c.mods or "quad_perm" in c.mods or "wave_" in c.mods: n = max(n, 2)
                if ("op_sel" in p.mods and not pb.startswith("v_pk_")) or "sdwa" in p.op or "dst_sel" in p.mods: n = max(n, 1)
            if pb.startswith("v_dot") and (vd & (c.src | c.dst)) and cb != pb: n = max(n, 3)
            if pb.startswith("v_dot") and cb == pb and len(c.ops) > 2 and (vd & set(regs_of(c.ops[1]) + regs_of(c.ops[2]))): n = max(n, 3)
            if sd & c.src:
                n = max(n, 2)
                if cb in ("v_readlane_b32", "v_writelane_b32"): n = max(n, 4)
            if cb == "v_cndmask_b32" and len(c.ops) == 3 and sd & set(regs_of("vcc")): n = max(n, 2)
            if ("s", 126) in sd: n = max(n, 5)
        if pb.startswith("v_dot") and c.kind in ("mfma", "ds", "vmem") and (vd & c.src): n = max(n, 3)
        if c.kind == "vmem" and sd & c.src: n = max(n, 5)
        if c.kind == "mfma" and ("s", 126) in sd: n = max(n, 4)
    if p.kind == "salu" and ("s", 124) in p.dst:
        if c.kind == "vmem" and ("s", 124) in c.src: n = max(n, 1)
        if c.kind == "ds" and "addtid" in c.op: n = max(n, 1)
    if p.kind == "mfma":
        P = p.passes
        big = {2: 5, 4: 8, 8: 12}[P]
        if c.kind == "mfma":
            if p.dst & (set(c.srcA) | set(c.srcB)): n = max(n, big)
            if p.dst & set(c.srcC):
                if p.dst == set(c.srcC) and c.passes == P: n = max(n, 2 if P == 2 else 0)
                else: n = max(n, {2: 4, 4: 6, 8: 10}[P])
            elif p.dst & c.dst:
                n = max(n, big)
        elif c.kind == "valu":
            if p.dst & (c.src | c.dst): n = max(n, big)
            if set(p.srcC) & c.dst: n = max(n, {2: 1, 4: 3, 8: 7}[P])
        elif c.kind in ("ds", "vmem"):
            if p.dst & (c.src | c.dst): n = max(n, big)
            if set(p.srcC) & c.dst: n = max(n, {2: 1, 4: 3, 8: 7}[P])
    if p.kind == "vmem" and "store" in p.op and ("x3" in p.op or "x4" in p.op):
        data = set(regs_of(p.ops[0])) if p.op.startswith("buffer") else set(regs_of(p.ops[1]))
        if data & c.dst: n = max(n, 2 if c.kind in ("valu", "mfma") else 1)
    return n

class Asm:
    def __init__(self):
        self.lines = []
    def __call__(self, s):
        for l in s.split("\n"):
            l = l.strip()
            if l: self.lines.append(l)
    def label(self, n): self.lines.append(n + ":")
    def text(self): return "\n".join(self.lines) + "\n"

def is_insn(l):
    return not (l.startswith((";", ".", "//")) or re.match(r"^[\w.$]+:", l))

def fix_hazards(lines, verbose=True, name=""):
    total = 0
    for _round in range(6):
        ins = [(k, I(l)) for k, l in enumerate(lines) if is_insn(l)]
        labels = {l[:-1].split(":")[0]: k for k, l in enumerate(lines) if re.match(r"^[\w.$]+:", l)}
        pos_of_line = {k: n for n, (k, _) in enumerate(ins)}
        def first_insn_at(k):
            while k < len(lines) and k not in pos_of_line: k += 1
            return pos_of_line.get(k)
        add = {}
        def check(seq_before, n):
            c = ins[n][1]
            dist = 0
            for p in seq_before:
                if p.op in ("s_endpgm",): break
                req = need(p, c)
                if req > dist: add[n] = max(add.get(n, 0), req - dist)
                dist += p.nstates
                if dist >= 20: break
        def prev_linear(n):
            out = []
            for m in range(n - 1, max(-1, n - 22), -1):
                if ins[m][1].op in ("s_branch", "s_endpgm", "s_setpc_b64"): break
                out.append(ins[m][1])
            return out
        for n in range(len(ins)):
            check(prev_linear(n), n)
        for n, (k, x) in enumerate(ins):
            if x.op.startswith(("s_cbranch", "s_branch")):
                tgt = first_insn_at(labels[x.ops[0]])
                if tgt is None: continue
                before = [x] + prev_linear(n)
                for m in range(tgt, min(len(ins), tgt + 21)):
                    mid = [ins[q][1] for q in range(m - 1, tgt - 1, -1)]
                    check(mid + before, m)
                    if ins[m][1].op in ("s_branch", "s_endpgm"): break
        if not add: break
        newl = []; last = -100
        byline = {ins[n][0]: v for n, v in add.items()}
        for k, l in enumerate(lines):
            if k in byline and (pos_of_line[k] - last > 20):
                v = byline[k]; last = pos_of_line[k]
                if verbose: print(f"[haz {name}] +{v} before: {l}")
                total += v
                while v > 0:
                    newl.append(f"s_nop {min(v,16)-1}"); v -= 16
            newl.append(l)
        lines[:] = newl
    else:
        return total + fix_hazards(lines, verbose, name)
    return total

def check_waits(lines, name=""):
    ins = [(k, I(l)) for k, l in enumerate(lines) if is_insn(l)]
    labels = {l[:-1].split(":")[0]: k for k, l in enumerate(lines) if re.match(r"^[\w.$]+:", l)}
    line2n = {}
    n = 0
    for k in range(len(lines)):
        line2n[k] = n
        if is_insn(lines[k]): n += 1
    errs = []
    vm = []; lg = []
    taken = set()
    n = 0; steps = 0
    while n < len(ins):
        steps += 1
        k, x = ins[n]
        if x.op == "s_waitcnt":
            m = re.search(r"vmcnt\((\d+)\)", x.text)
            if m:
                c = int(m.group(1)); vm = vm[len(vm) - c:] if c < len(vm) else vm
                if c == 0: vm = []
            m = re.search(r"lgkmcnt\((\d+)\)", x.text)
            if m:
                c = int(m.group(1))
                if c == 0: lg = []
                elif any(t == "smem" for t, _ in lg):
                    ds = [e for e in lg if e[0] == "ds"]; sm = [e for e in lg if e[0] == "smem"]
                    lg = sm + (ds[len(ds) - c:] if c < len(ds) else ds)
                else: lg = lg[len(lg) - c:] if c < len(lg) else lg
        else:
            touched = x.src | x.dst
            for q in (vm, lg):
                for t, d in q:
                    if d & touched:
                        if (d & x.src) or not ((q is vm and x.kind == "vmem") or (q is lg and x.kind == "ds" and t == "ds")):
                            errs.append(f"[wait {name}] line {k}: '{x.text}' touches in-flight {sorted(d & touched)[:4]}")
            if x.kind == "vmem" and not x.op.startswith(("buffer_inv",)): vm.append(("vm", x.dst))
            elif x.kind == "ds": lg.append(("ds", x.dst))
            elif x.kind == "smem": lg.append(("smem", x.dst))
            if len(vm) > 63: errs.append(f"[wait {name}] line {k}: vmcnt overflow ({len(vm)})"); vm = vm[1:]
        if x.op in ("s_endpgm", "s_branch") and not (x.op == "s_branch" and labels[x.ops[0]] < k and n not in taken):
            vm = []; lg = []
        if x.op.startswith(("s_cbranch", "s_branch")) and labels[x.ops[0]] < k and n not in taken:
            taken.add(n); n = line2n[labels[x.ops[0]]]; continue
        n += 1
    seen = set()
    for e in errs:
        if e not in seen:
            if len(seen) < 12: print(e)
            seen.add(e)
    return len(seen)

def kd(name, vgpr, sgpr, accum=None):
    if accum is None: accum = (vgpr + 3) // 4 * 4
    return f""".p2align 6
.amdhsa_kernel {name}
  .amdhsa_next_free_vgpr {vgpr}
  .amdhsa_next_free_sgpr {sgpr}
  .amdhsa_accum_offset {accum}
  .amdhsa_group_segment_fixed_size 0
  .amdhsa_kernarg_size 120
  .amdhsa_user_sgpr_count 2
  .amdhsa_user_sgpr_kernarg_segment_ptr 1
  .amdhsa_system_sgpr_workgroup_id_x 1
  .amdhsa_float_denorm_mode_32 3
.end_amdhsa_kernel
"""

import subprocess, tempfile, os
def insn_sizes(lines):
    src = '.amdgcn_target "amdgcn-amd-amdhsa--gfx950"\n.text\n' + "\n".join(l for l in lines if not l.startswith(".p2align")) + "\n"
    d = tempfile.mkdtemp()
    open(d + "/a.s", "w").write(src)
    subprocess.run(["clang", "-x", "assembler", "-target", "amdgcn-amd-amdhsa", "-mcpu=gfx950", "-c", d + "/a.s", "-o", d + "/a.o"], check=True)
    out = subprocess.run(["llvm-objdump", "-d", "--mcpu=gfx950", d + "/a.o"], capture_output=True, text=True).stdout
    sz = [4 * len(l.split("//")[1].split(":")[1].split("<")[0].split()) for l in out.split("\n") if "//" in l and l.startswith("\t")]
    res = []; k = 0
    for l in lines:
        if is_insn(l): res.append(sz[k]); k += 1
        else: res.append(0)
    assert k == len(sz), (k, len(sz))
    return res

def add_page_stubs(lines, regions, wave_sreg, page=4096):
    sz = insn_sizes(lines)
    out = []; stubs = {}
    cur = None; used = 0
    for l, s in zip(lines, sz):
        for tag, st, en in regions:
            if l == st: cur = tag; stubs[tag] = 0; used = page
            if l == en: cur = None
        if cur and l.startswith("ds_read") and used > page - 160:
            n = stubs[cur]; stubs[cur] += 1
            out += [f"s_branch PG{cur}_{n}", f".p2align {page.bit_length()-1}", f"PS{cur}_{n}:", "s_setpc_b64 s[62:63]", f"PG{cur}_{n}:"]
            used = 4
        out.append(l); used += s
    res = []
    for l in out:
        if l.startswith("; @warm"):
            u = l[7:]
            res += ["s_bfe_u32 s64, s2, 0x20003", "s_cmp_eq_u32 s64, 3", f"s_cbranch_scc1 PWC{u}"]
            for tag in "BC":
                res += [f"PW{tag}{u}:"]
                for w in range(4):
                    res += [f"s_cmp_lg_u32 s{wave_sreg}, {w}", f"s_cbranch_scc1 PW{tag}{u}_{w}"]
                    res += [f"s_call_b64 s[62:63], PS{tag}_{n}" for n in range(w, stubs[tag], 4)]
                    res += [f"PW{tag}{u}_{w}:"]
                if tag == "B": res += [f"s_branch PWE{u}"]
            res += [f"PWE{u}:"]
        res.append(l)
    return res
```

```python
import sys
sys.path.insert(0, "work")
from asmlib import *
def build(gens, path, verbose=True):
    body = []; infos = []
    for g in gens:
        A = Asm(); info = g(A)
        n = fix_hazards(A.lines, verbose=verbose, name=info["name"])
        e = check_waits(A.lines, name=info["name"])
        print(f"{info['name']}: {sum(is_insn(l) for l in A.lines)} insns, {n} nop states inserted, {e} wait errors")
        if info.get("stubs"): A.lines = add_page_stubs(A.lines, *info["stubs"])
        body += A.lines; infos.append(info)
    out = []
    for i in infos:
        out.append(f"; @launch kernel={i['name']} grid=({i['grid']},1,1) block=({i['block']},1,1) lds={i['lds']}")
    out.append('.amdgcn_target "amdgcn-amd-amdhsa--gfx950"\n.text')
    out += body
    out.append(".fill 8192, 4, 0xbf810000")
    out.append('.section .rodata,"a"')
    for i in infos: out.append(kd(i["name"], i["vgpr"], i["sgpr"], i.get("accum")))
    open(path, "w").write("\n".join(out) + "\n")
```

```python
from asmlib import *
from layout import *
import struct, os
def fhex(x): return "0x%08x" % struct.unpack("<I", struct.pack("<f", x))[0]
OPT = dict(PRE=11, Q=2, SVC=66, SVC0=97, LAT=900, LATS=1400, GAP=34, PUBD=36, PUBE=50, MG=56, POLLD=16, CAP=6, L1_B=34, L1_C=26, CORD=3, P=6, FAKE=0, HSC=1, LATHE=900, LATT=340, SPLIT=0, SMG=36, SVD=22, DLS=0, XB=1, CAPL=6, DMG=46, URG=10, WIN=11, LATH=900, LATD=500, LATX=900, BATCH=1, DSL=70, MERGE=0, NPRE=0, NPRE2=3, PT=0, SLP=2, STUB=1, NOST=0, NOH=0, NOX=0, NOP=0, STS=15, SDL=4, SSP=8, BORD=2, L1A_B=-12, L1A_C=0, HLC=1)
for k in OPT:
    if os.environ.get(k): OPT[k] = int(os.environ[k])

SLOT = 24576
K3_LDS = 6 * SLOT
V_L16 = 1; V_D1 = 2; V_D2 = 4; V_B1 = 6; V_B2 = 8; V_B3 = 10
V_G2 = 12; V_XA = 13; V_FL = 14; V_NON = 15; V_ZERO = 16; V_L4 = 17
V_PT = 19; V_RS = 18; V_CK = 20
W0 = 24; OWN = 48; S0 = 128; S1 = 160; S2 = 192; AUGR = 224; V_ST = 236; STT = 128
SETS = [S1, S2, S0, S1, S0]
G1ORD = [(0, 0), (1, 0), (0, 1), (1, 1), (0, 2), (1, 2)] + [(p, u) for p in range(2, 5) for u in range(3)]
if OPT["MERGE"] == 0: G1ORD = [(p, u) for p in range(5) for u in range(3)]
if OPT["MERGE"] == 2: G1ORD[:6] = [(0, 0), (1, 0), (0, 1), (0, 2), (1, 1), (1, 2)]
if OPT["MERGE"] == 3: G1ORD[:6] = [(0, 0), (0, 1), (1, 0), (0, 2), (1, 1), (1, 2)]
S_DMA = 6; S_X = 7; S_H = 7; S_ST = 51; S_NON = 52

def dma1(st, m):
    p, u = G1ORD[st]; sg, e = divmod(m, 2)
    su = [f"s_add_u32 m0, s30, {(st % 6)*SLOT + sg*8192}", f"s_add_u32 s{S_DMA}, s{64+u}, {p*128 + 64*sg*9216}"] if e == 0 else []
    return su, f"buffer_load_dwordx4 v{V_D1+e}, s[12:15], s{S_DMA} offen offset:{1024*e} lds"
XRING = 18
def xload(s):
    su = [f"s_add_u32 s{S_X}, s{67+s//12}, {(s%12)*1024}"] if s % 4 == 0 else []
    r = OWN + 4 * (s % XRING)
    return su, f"buffer_load_dwordx4 v[{r}:{r+3}], v{V_XA}, s[8:11], s{S_X} offen offset:{1024*(s%4)}"
def xfix(s):
    r = OWN + 4 * (s % XRING)
    return [f"v_permlane16_swap_b32 v{r}, v{r+2}", f"v_permlane16_swap_b32 v{r+1}, v{r+3}"] + [f"v_accvgpr_write_b32 a{4*s+i}, v{r+i}" for i in range(4)]

def gen_k3(a):
    if FUSE:
        a("K3_entry:")
        a(f"s_lshl_b32 s3, s2, 4\ns_add_u32 s33, s3, {FLB}\nv_lshlrev_b32 v60, 12, v0\nv_and_b32 v60, 0x7000, v60\nv_mov_b32 v61, s99")
    else:
        a(".globl k3_kernel\n.p2align 8\n.type k3_kernel,@function\nk3_kernel:")
        a("s_cmp_ge_u32 s2, 256\ns_cbranch_scc1 K3_end")
    a("s_load_dwordx2 s[8:9], s[0:1], 112\ns_load_dwordx2 s[12:13], s[0:1], 64\ns_load_dwordx4 s[16:19], s[0:1], 80\ns_load_dwordx2 s[20:21], s[0:1], 96")
    if STAMP: a("s_memtime s[60:61]")
    rt_begin(a, 100)
    a("v_lshrrev_b32 v22, 6, v0\nv_and_b32 v0, 63, v0")
    a("s_and_b32 s24, s2, 3")
    a("v_readfirstlane_b32 s27, v22")
    a("s_bfe_u32 s25, s2, 0x10002\ns_lshl_b32 s25, s25, 3\ns_lshr_b32 s3, s2, 5\ns_add_u32 s25, s25, s3")
    a("s_bfe_u32 s26, s2, 0x20003")
    a("v_lshrrev_b32 v23, 3, v0\nv_lshl_add_u32 v23, v22, 4, v23")
    a("v_bfe_u32 v48, v0, 4, 1\nv_lshlrev_b32 v49, 2, v48\nv_and_b32 v50, 7, v0\nv_xor_b32 v49, v49, v50\nv_lshlrev_b32 v49, 4, v49")
    a(f"v_mul_u32_u24 v{V_D1}, 9216, v23\nv_add_u32 v{V_D1}, v{V_D1}, v49\nv_add_u32 v{V_D1+1}, {8*9216-1024}, v{V_D1}\nv_lshlrev_b32 v{V_L16}, 4, v0\nv_and_b32 v{V_XA}, 0xf0, v{V_L16}\nv_lshl_add_u32 v{V_XA}, v48, 9, v{V_XA}\nv_lshrrev_b32 v50, 5, v0\nv_lshl_add_u32 v{V_XA}, v50, 8, v{V_XA}")
    a("s_mul_i32 s28, s24, 1152\ns_mul_i32 s3, s26, 320\ns_add_u32 s28, s28, s3")
    a("s_lshl_b32 s29, s28, 1\ns_lshl_b32 s30, s27, 11")
    a("s_lshl_b32 s31, s25, 2\ns_add_u32 s31, s31, s27")
    a(f"s_mul_i32 s32, s31, 36864\ns_add_u32 s32, s32, {HP8}")
    a("s_cmp_eq_u32 s26, 3\ns_cselect_b32 s3, 0, s26")
    if not OPT["SPLIT"]:
        for u in range(3): a(f"s_add_u32 s{64+u}, s29, {u*192*9216}\ns_add_u32 s{67+u}, s32, {u*12288}")
    for u in range(3 if OPT["SPLIT"] else 0):
        a(f"s_mul_i32 s40, s3, {192*9216}\ns_add_u32 s{64+u}, s29, s40\ns_mul_i32 s40, s3, 12288\ns_add_u32 s{67+u}, s32, s40")
        if u < 2: a("s_add_u32 s3, s3, 1\ns_cmp_eq_u32 s3, 3\ns_cselect_b32 s3, 0, s3")
    a(f"s_mov_b32 s10, {WSZ}\ns_mov_b32 s11, 0x20000\ns_mov_b32 s14, {576*9216}\ns_mov_b32 s15, 0x20000\ns_mov_b32 s3, {NONCE}")
    a("s_waitcnt lgkmcnt(0)")
    if FUSE:
        a("s_waitcnt vmcnt(0)\ns_barrier\ns_cmp_lg_u32 s27, 0\ns_cbranch_scc1 K3_nf\ns_cmp_ge_u32 s2, 144\ns_cbranch_scc1 K3_nf\nbuffer_store_dword v61, v60, s[8:11], s33 offen sc1\nK3_nf:")
        if STAMP: a("s_memrealtime s[58:59]")
    def emit(ops):
        for op in ops:
            for x in op[0]: a(x)
            a(op[1])
    if FUSE:
        a(f"s_mov_b32 s{S_NON}, s99\nv_mov_b32 v{V_NON}, s99\nv_mov_b32 v{V_ZERO}, 0")
        emit([dma1(st, m) for st in range(OPT["NPRE2"]) for m in range(6)])
    else:
        emit([dma1(0, m) for m in range(6)] + [])
        a(f"s_load_dword s{S_NON}, s[8:9], s3")
    a(f"s_mov_b32 s4, s18\ns_mov_b32 s5, s19\nv_lshl_add_u32 v56, v22, 10, v{V_L16}")
    a(f"s_mov_b32 s18, {4608*1152}\ns_mov_b32 s19, 0x20000\ns_mov_b32 s22, {2048*1152}\ns_mov_b32 s23, 0x20000")
    a(f"v_mul_u32_u24 v{V_D2}, 1152, v23\nv_add_u32 v{V_D2}, v{V_D2}, v49\nv_add_u32 v{V_D2+1}, {8*1152-1024}, v{V_D2}\nv_lshrrev_b32 v{V_G2}, 5, v0")
    a("v_bfe_u32 v51, v0, 2, 2\nv_and_b32 v52, 3, v0\nv_lshlrev_b32 v53, 3, v52\nv_lshl_add_u32 v53, v48, 5, v53")
    a("v_lshrrev_b32 v54, 1, v51\nv_lshl_add_u32 v53, v54, 6, v53\nv_lshl_add_u32 v53, v51, 7, v53")
    a(f"v_lshl_add_u32 v{V_B1}, v{V_G2}, 9, v53\nv_xor_b32 v{V_B1+1}, 64, v{V_B1}\nv_add_u32 v53, {2*SLOT}, v{V_B1}")
    a(f"s_and_b32 s3, s24, 1\ns_lshl_b32 s40, s3, 6\nv_xor_b32 v{V_B2}, s40, v53\nv_xor_b32 v{V_B2+1}, 64, v{V_B2}")
    a(f"s_lshl_b32 s3, s3, 5\ns_lshr_b32 s40, s24, 1\ns_lshl_b32 s40, s40, 6\ns_or_b32 s3, s3, s40\nv_xor_b32 v{V_B3}, s3, v53\nv_xor_b32 v{V_B3+1}, 64, v{V_B3}")
    if OPT["FAKE"]:
        for r in range(V_B1, V_B1 + 6): a(f"v_add_u32 v{r}, {(0 if r < V_B2 else 2*SLOT) + 1024*(r%2)}, v{V_L16}")
    a(f"s_lshl_b32 s33, s28, 4\ns_add_u32 s33, s33, {AUG}\ns_nop 0")
    a(f"s_mul_i32 s34, s24, {18*64}\ns_add_u32 s34, s34, s31\ns_lshl_b32 s34, s34, 12\ns_add_u32 s34, s34, {H1F}")
    a(f"s_mul_i32 s35, s24, {1152*1152}\ns_lshl_b32 s3, s26, 8\ns_add_u32 s35, s35, s3")
    a(f"s_lshl_b32 s36, s31, 2\ns_add_u32 s36, s36, s24\ns_lshl_b32 s36, s36, 10\ns_add_u32 s36, s36, {FLG}")
    a("s_lshl_b32 s37, s26, 2\ns_add_u32 s37, s37, s36")
    a("s_mov_b32 s53, 0\ns_mov_b32 s39, 0xffff0000")
    a(f"s_lshl_b32 s38, s31, 2\ns_add_u32 s38, s38, s24\ns_lshl_b32 s38, s38, 11\ns_add_u32 s38, s38, {STX}\ns_lshl_b32 s46, s26, 9\ns_add_u32 s46, s46, s38\nv_and_b32 v{STT+31}, 0x1f0, v{V_L16}")
    a("s_lshr_b32 s54, s24, 1\ns_lshl_b32 s54, s54, 7\ns_add_u32 s54, s54, s35\ns_xor_b32 s55, s54, 128")
    a(f"v_bfe_u32 v55, v0, 2, 1\nv_cmp_eq_u32 vcc, v55, v48\nv_mov_b32 v55, 0x3f803f80\nv_lshlrev_b32 v{V_L4}, 2, v0\nv_mov_b32 v{V_ZERO}, 0\nv_add_u32 v{V_PT}, 0x2200000, v{V_L4}")
    for i in range(4): a(f"v_cndmask_b32 v{STT+12+i}, 0, v55, vcc")
    a(f"s_waitcnt lgkmcnt(0)\nv_mov_b32 v{V_NON}, s{S_NON}")
    a("s_cmp_eq_u32 s26, 3\ns_cbranch_scc1 K3_C")
    body(a, "B")
    a("K3_C:")
    body(a, "C")
    a("K3_end:\ns_endpgm")
    return dict(name="k3_kernel", vgpr=512, sgpr=102, accum=256, grid=256, block=256, lds=K3_LDS, stubs=([(t, f"; @beg{t}", f"; @end{t}") for t in "BC"], 7) if OPT["STUB"] else None)

PUBT = {}
HL = {1: ' sc1', 0: '', 2: ' nt', 3: ' sc0'}[OPT['HLC']]
HS = {1: ' sc1', 0: '', 2: ' nt', 3: ' sc0'}[OPT['HSC']]

def body(a, T):
    NP = 5 if T == "B" else 3
    NS1 = 3 * NP; NOWN = 4 * NP
    NPC = 2 if T == "B" else 3
    if T == "B":
        a("s_add_u32 s41, s26, 1\ns_cmp_eq_u32 s41, 3\ns_cselect_b32 s41, 0, s41\ns_add_u32 s42, s41, 1\ns_cmp_eq_u32 s42, 3\ns_cselect_b32 s42, 0, s42")
        seg = {"own": 0, "B1": 1, "B2": 2}
        for nm, sr in (("own", "s26"), ("B1", "s41"), ("B2", "s42")):
            n = seg[nm]
            a(f"s_mul_i32 s3, {sr}, {320*1152}\ns_add_u32 s{43+n}, s54, s3\ns_add_u32 s{96+n}, s55, s3\ns_mul_i32 s3, {sr}, {20*65536}\ns_add_u32 s{47+n}, s34, s3")
        R = lambda n, x, y: [(n, k) for k in range(x, y)]
        BP = lambda p: R("B1", 4 * p, 4 * p + 4) + R("B2", 4 * p, 4 * p + 4)
        order = R("own", 0, 20) + BP(0) + R("C", 0, 4) + BP(1) + R("C", 4, 8) + BP(2) + R("C", 8, 12) + BP(3) + BP(4)
        need_lvl = lambda sg, k: k // 4 + 1
        g2st = [(0, "X", 1), (0, "Z", 1), (1, "X", 1), (2, "X", 1), (3, "X", 1), (4, "X", 1), (1, "Z", 0), (2, "Z", 0), (3, "Z", 0), (4, "Z", 0), (5, "X", 1), (5, "Z", 0)]
        zs = [(b, "Z", 0) for b in range(1, 6)]; nb = {0: 4, 1: 2, 2: 0, 3: 1}[OPT["BORD"]]
        g2st = g2st[:6] + zs[:nb] + [(5, "X", 1)] + zs[nb:]
        def wbase(pr, sg, k):
            if sg == "C": return (54 if pr == "Z" else 55, (60 + k) * 16 * 1152)
            return ((43 if pr == "Z" else 96) + seg[sg], k * 16 * 1152)
        hbase = lambda sg, k: (34, (60 + k) * 65536) if sg == "C" else (47 + seg[sg], k * 65536)
        L1 = OPT["L1_B"]; L1A = OPT["L1A_B"]; HB = 224
    else:
        a(f"s_add_u32 s47, s34, {60*65536}")
        order = [("own", k) for k in range(12)] + [(f"M{b}", 4 * p + k) for p in range(5) for b in range(3) for k in range(4)]
        need_lvl = lambda sg, k: k // 4 + 1
        F = lambda b, s: [(b, c, 1) for c in s]
        if OPT["CORD"] == 0:
            g2st = F(0, "XYZ") + F(1, "XYZ") + F(2, "XY") + F(3, "XY") + F(4, "XY") + [(2, "Z", 0), (3, "Z", 0), (4, "Z", 0)] + F(5, "XY") + [(5, "Z", 0)]
        elif OPT["CORD"] == 2:
            g2st = F(0, "XYZ") + F(1, "XYZ") + F(2, "XY") + F(3, "XY") + F(2, "Z") + F(4, "XY") + F(5, "XY") + [(3, "Z", 0), (4, "Z", 0), (5, "Z", 0)]
        elif OPT["CORD"] == 3:
            g2st = F(0, "XYZ") + F(1, "XYZ") + F(2, "XY") + F(3, "XY") + F(4, "XY") + F(5, "XY") + [(2, "Z", 0), (3, "Z", 0), (4, "Z", 0), (5, "Z", 0)]
        else:
            g2st = F(0, "XYZ") + F(1, "XYZ") + F(2, "XYZ") + F(3, "XY") + F(4, "X") + [(3, "Z", 0)] + F(4, "Y") + [(4, "Z", 0)] + F(5, "XY") + [(5, "Z", 0)]
        lk = lambda sg, k: 60 + k if sg == "own" else 20 * int(sg[1]) + k
        wbase = lambda pr, sg, k: ({"Z": 54, "X": 55, "Y": 35}[pr], lk(sg, k) * 16 * 1152 + (256 if pr == "Y" else 0))
        hbase = lambda sg, k: (34, lk(sg, k) * 65536)
        L1 = OPT["L1_C"]; L1A = OPT["L1A_C"]; HB = 96
    P = OPT["P"]; NA = P + 2
    WQ = [W0 + 4 * k for k in range(6)] + ([248, 252] if T == "B" else [120, 124])
    polls = [1, 2, 3, 4]
    K5 = 64 if T == 'B' else 60
    ckreg = lambda g: (80 + g) if T == 'B' else V_CK + g
    TILE = {("Z", 0): 0, ("Z", 1): 1, ("X", 0): 2, ("X", 1): 3, ("Y", 0): 4, ("Y", 1): 5}
    treg = lambda t: S1 + 16 * t
    M = []
    for st in range(NS1):
        p, u = G1ORD[st]
        for s in range(12):
            for j in range(2):
                M.append(dict(st=st, s=s, base=V_B1 + j, acc=SETS[p] + 16 * j, b=("x", 12 * u + s), first=(u == 0 and s == 0), g1=True))
    seen = set()
    for n, (blk, pr, full) in enumerate(g2st):
        for s in range(12):
            for j in ((0, 1) if full else (1,)):
                t = TILE[(pr, j)]
                M.append(dict(st=NS1 + n, s=s, base=(V_B3 if pr == "Y" else V_B2) + j, acc=treg(t), b=("k", 12 * blk + s), first=t not in seen, g1=False, tile=t)); seen.add(t)
    tail0 = len(M)
    for n, (blk, pr, full) in enumerate(g2st):
        if not full:
            for s in range(12):
                M.append(dict(st=NS1 + n, s=s, base=V_B2, acc=treg(0), b=("k", 12 * blk + s), first=False, g1=False, tile=0))
    NM = len(M); assert NM == 648
    first_use = {}; last_of_tile = {}; stage_start = {}
    for i, m in enumerate(M):
        first_use.setdefault(m["b"], i); stage_start.setdefault(m["st"], i)
        if not m["g1"]: last_of_tile[m["tile"]] = i
    g1_end = NS1 * 24
    cnt = [0]
    def e(s):
        for l in s.split("\n"):
            a(l)
            if not l.endswith(":"): cnt[0] += 1
    vm = []
    sim = dict(now=0.0, pipe=0.0, blk=0)
    slots = []; cur = [0]
    latof = lambda tag: {"sl": OPT["LATH"], "D": OPT["LATH"], "k": OPT["LATH"], "x": OPT["LATX"], "rcv": OPT["LATH"], "res": OPT["LATX"], "aug": OPT["LATX"]}.get(tag[0], OPT["LATD"])
    def note(tag, size=1.0, store=False):
        lat = OPT["LATHE"] if tag[0] == "k" and cur[0] < OPT["LATT"] else latof(tag)
        sim["pipe"] = max(sim["now"], sim["pipe"]) + OPT["SVC"] * size
        d = max(sim["pipe"] + lat, slots[-1][0] if slots else 0)
        live = [x for x in slots[-30:] if x[0] > sim["now"]]
        while sum(x[1] for x in live) > 11.5: sim["now"] = live.pop(0)[0]; sim["blk"] += 1
        slots.append((d, min(size, 1.0)))
        c = max(d, sim["pipe"] + OPT["LATS"]) if store else d
        if vm: c = max(c, vm[-1][1])
        vm.append((tag, c)); state["lastk"] = tag[0] == "k"
    def room(dt=0):
        t = sim["now"] + dt
        nx = next((x for x in pool if x[0](cur[0])), None)
        if nx is not None and nx[1] - cur[0] < latof(nx[3]) / OPT["GAP"] * OPT["URG"] / 10 and len(vm) < 60: return True
        return sum(x[1] for x in slots[-30:] if x[0] > t) < OPT["WIN"] and sim["pipe"] - t < OPT["Q"] * OPT["SVC"] and len(vm) < 60
    state = dict(aug0=False, sv=None, hb=None, lst=0, free=4, lvl=0, res=False, lastk=False)
    def vwait(*tags):
        idx = [i for i, t in enumerate(vm) if t[0] in tags]
        if not idx: return
        n = len(vm) - 1 - idx[-1]; assert n <= 63
        e(f"s_waitcnt vmcnt({n})"); sim["now"] = max(sim["now"], vm[idx[-1]][1]); del vm[:idx[-1] + 1]
    NX0 = OPT["PRE"]
    ND0 = OPT['NPRE2'] if FUSE else 1
    if not FUSE:
        for m in range(6): note(("d", 0))
    for s in range(NX0): note(("x", s))
    def dma(st, m):
        if st < NS1: return dma1(st, m)
        blk, pr, _ = g2st[st - NS1]; sg, ee = divmod(m, 2)
        sb, off = wbase(pr, *order[12 * blk + 4 * sg])
        su = [f"s_add_u32 m0, s30, {(st % 6)*SLOT + sg*8192}", f"s_add_u32 s{S_DMA}, s{sb}, {off}"] if ee == 0 else []
        return su, f"buffer_load_dwordx4 v{V_D2+ee}, s[16:19], s{S_DMA} offen offset:{1024*ee} lds"
    def hreg(kap):
        n = kap - NOWN
        return 144 + 4 * n if n < 28 else 4 * (n - 28)
    def hload(kap):
        sb, off = hbase(*order[kap]); r = hreg(kap)
        su = [f"s_add_u32 s{S_H}, s{sb}, {off}"] if kap % 4 == 0 else []
        return su, f"buffer_load_dwordx4 a[{r}:{r+3}], v{V_L16}, s[8:11], s{S_H} offen offset:{1024*(kap%4)}{HL}"
    third = {V_B1: 0, V_B1 + 1: 0, V_B2: 1, V_B2 + 1: 1, V_B3: 1, V_B3 + 1: 1}
    def wread(i):
        m = M[i]; b = m["base"]; th = (m["st"] % 6) // 2
        if third[b] != th:
            e(f"v_add_u32 v{b}, {((th - third[b]) * 2 * SLOT) & 0xffffffff}, v{b}"); third[b] = th
        r = WQ[i % NA]
        o = (m["st"] % 2) * SLOT + m["s"] * 2048
        if OPT["FAKE"]: e(f"ds_read_b128 v[{r}:{r+3}], v{b} offset:{o}"); return
        e(f"ds_read_b64_tr_b16 v[{r}:{r+1}], v{b} offset:{o}")
        e(f"ds_read_b64_tr_b16 v[{r+2}:{r+3}], v{b} offset:{o + 1024}")
    RPF = 1 if OPT["FAKE"] else 2
    slow = []
    withC = lambda lvl: T == "B" and lvl <= 3
    def poll_check(lvl):
        for r in (56, 57, 58) + ((59,) if withC(lvl) else ()):
            if not OPT["NOP"]: e(f"s_cmp_lg_u32 s{r}, s{S_NON}\ns_cbranch_scc1 K3{T}_slow{lvl}")
        e(f"K3{T}_back{lvl}:"); slow.append(lvl)
    aq = []
    def to_pool(o):
        dl = max([cur[0] + OPT["SDL"]] + [x[1] + 0.01 for x in pool if x[3][0] == "s"])
        pool.append([lambda i: i >= state["lst"] + OPT["SSP"], dl, o[1], o[2], OPT["STS"] / 10.0, o[3]]); pool.sort(key=lambda x: x[1])
    def do_store(o):
        if o[0] == "POOL": return to_pool(o)
        if OPT["NOX"]: return
        for x in o[0]: e(x)
        e(o[1]); note(o[2], o[3], store=True)
        if o[4]: o[4]()
    def flush_aq():
        while aq:
            o = aq.pop(0)[1]
            e(o) if isinstance(o, str) else do_store(o)
            sim["now"] += 5
    SR = STT + 16
    def stats_part():
        s = STT; L = []
        e = lambda x: L.extend(x.split('\n'))
        for i in range(4): e(f"v_add_f32 v{s+4+i}, v{s+4+i}, v{s+8+i}")
        e("s_mov_b32 s40, 0xaaaaaaaa\ns_mov_b32 s41, 0xaaaaaaaa\ns_mov_b32 s56, 0xcccccccc\ns_mov_b32 s57, 0xcccccccc")
        e(f"v_cndmask_b32 v{s+4}, v{s+4}, v{s+5}, s[40:41]\nv_cndmask_b32 v{s+6}, v{s+6}, v{s+7}, s[40:41]\nv_cndmask_b32 v{s+2}, v{s+4}, v{s+6}, s[56:57]")
        e(f"v_mov_b32 v{s+3}, v{s+2}\nv_permlane32_swap_b32 v{s+2}, v{s+3}\nv_add_f32 v{s+1}, v{s+2}, v{s+3}\nv_bitop3_b32 v{s+2}, v{s}, v{s+1}, v{V_NON} bitop3:0x96")
        return L
    sload = lambda k: f"buffer_load_dwordx3 v[{SR+4*k}:{SR+4*k+2}], v{STT+31}, s[8:11], s38 offen offset:{512*k} sc1"
    sver = [f"v_bitop3_b32 v{SR+4*k+3}, v{SR+4*k}, v{SR+4*k+1}, v{SR+4*k+2} bitop3:0x96" for k in range(3)] + [f"v_xor_b32 v{SR+4*k+3}, s{S_NON}, v{SR+4*k+3}" for k in range(3)] + \
           [f"v_or3_b32 v{SR+3}, v{SR+3}, v{SR+7}, v{SR+11}", f"v_cmp_ne_u32 s[56:57], 0, v{SR+3}"]
    def stats_final():
        s = STT; L = []
        e = lambda x: L.extend(x.split('\n'))
        if not OPT["SPLIT"]: e(f"v_mov_b32 v{s+2}, v{s+1}")
        else: e(f"v_add_f32 v{s}, v{SR}, v{SR+4}\nv_add_f32 v{s+2}, v{SR+1}, v{SR+5}\nv_add_f32 v{s}, v{s}, v{SR+8}\nv_add_f32 v{s+2}, v{s+2}, v{SR+9}")
        e(f"v_mul_f32 v{s}, {fhex(-1.0/576)}, v{s}\nv_cmp_gt_u32 vcc, 32, v0\nv_mul_f32 v{s+2}, {fhex(1.0/576)}, v{s+2}")
        e(f"v_fma_f32 v{s+2}, -v{s}, v{s}, v{s+2}\nv_max_f32 v{s+2}, 0, v{s+2}")
        e(f"v_cvt_pk_bf16_f32 v{s+2}, v{s+2}, v{s+2}\nv_and_b32 v{s+2}, s39, v{s+2}\nv_add_f32 v{s+2}, {fhex(1e-5)}, v{s+2}")
        e(f"v_cvt_pk_bf16_f32 v{s+2}, v{s+2}, v{s+2}\nv_and_b32 v{s+2}, s39, v{s+2}\nv_sqrt_f32 v{s+2}, v{s+2}")
        e(f"v_cvt_pk_bf16_f32 v{s+4}, v{s}, v{s}\nv_cvt_pk_bf16_f32 v{s+5}, v{s+2}, v{V_ZERO}")
        for i in range(3): e(f"v_cndmask_b32 v{V_ST+i}, 0, v{s+4}, vcc\nv_cndmask_b32 v{V_ST+4+i}, v{s+4}, v{V_ZERO}, vcc")
        e(f"v_lshlrev_b32 v{s+2}, 16, v{s+5}\nv_rcp_f32 v{s+2}, v{s+2}\nv_cndmask_b32 v{V_ST+3}, 0, v{s+5}, vcc\nv_cndmask_b32 v{V_ST+7}, v{s+5}, v{V_ZERO}, vcc")
        e(f"v_mul_f32 v{V_RS}, v{s+2}, v{s+2}")
        return L
    pubq = []
    def epilogue1(p, at):
        c0 = SETS[p]
        for fr in range(4):
            c = c0 + 8 * fr; k = 4 * p + fr; o = OWN + 4 * k
            ops = [f"v_mul_f32 v{c+i}, v{c+i}, |v{c+i}|" for i in range(8)]
            ops += [f"v_cvt_pk_bf16_f32 v{c+i}, v{c+2*i}, v{c+2*i+1}" for i in range(4)]
            ops += [f"v_pk_max_i16 v{o+i}, v{c+i}, 0" for i in range(4)]
            if p == 4: ops += [f"v_bitop3_b32 v{S0+4}, v{V_NON if fr == 0 else S0+4}, v{o}, v{o+1} bitop3:0x96", f"v_bitop3_b32 v{S0+4}, v{S0+4}, v{o+2}, v{o+3} bitop3:0x96"]
            for x in ops: aq.append((at, x))
            after = (lambda p=p: pubq.append((cur[0] + (OPT["PUBE"] if p <= 2 else OPT["PUBD"]), p))) if fr == 3 and p < 4 else None
            op = ([f"s_add_u32 s{S_ST}, s47, {p*262144}"] if fr == 0 else [], f"buffer_store_dwordx4 v[{o}:{o+3}], v{V_L16}, s[8:11], s{S_ST} offen offset:{1024*fr}{HS}")
            aq.append((at, ("POOL", op, ("s", p), after)))
            if p == 4 and fr == 3:
                def done():
                    PUBT[5] = cur[0]; assert cur[0] < t_set
                aq.append((at, ("POOL", ([], f"buffer_store_dword v{S0+4}, v{V_PT}, s[8:11], s{S_ST} offen sc1"), ("s", p), done)))
    def do_aug(p):
        vwait(("aug", p))
        for j in range(2):
            c = SETS[p] + 16 * j; g = AUGR + 4 * (p % 3); b = V_ST + 4 * j
            a(f"v_mfma_f32_32x32x16_bf16 v[{c}:{c+15}], v[{g}:{g+3}], v[{b}:{b+3}], v[{c}:{c+15}]")
        sim["now"] += 64; cnt[0] = 0
        epilogue1(p, cur[0] + 3)
    sent = {1: 0, 2: 0, 3: 0}
    def send(c, j, n, at):
        ck = V_CK + j - 1
        for i in range(4): aq.append((at, f"v_cvt_pk_bf16_f32 v{c+i}, v{c+2*i}, v{c+2*i+1}"))
        aq.append((at, ([], f"buffer_store_dwordx4 v[{c}:{c+3}], v{V_L16}, s[8:11], s{63+j} offen offset:{1024*n} sc1", ("snd", 0), OPT["STS"] / 10.0, None)))
        aq.append((at, f"v_bitop3_b32 v{ck}, v{V_NON if sent[j] == 0 else ck}, v{c}, v{c+1} bitop3:0x96"))
        aq.append((at, f"v_bitop3_b32 v{ck}, v{ck}, v{c+2}, v{c+3} bitop3:0x96"))
        sent[j] += 1
        if sent[j] == NPC: aq.append((at, ([], f"buffer_store_dword v{ck}, v{V_L4}, s[8:11], s{63+j} offen offset:3072 sc1", ("snd", 0), 1.0, None)))
    HR = S0; BR = S0 + 12; SEL = S0 + 24; RXJ = {2: treg(2), 3: treg(3), 1: treg(1)}; V_OA = V_D1; V_T = 23
    own_regs = [treg(0) + 4 * r for r in range(4)] + ([treg(4), treg(4) + 4] if T == "C" else [])
    setup_ops = ["s_lshl_b32 s41, s26, 7", "s_lshl_b32 s3, s24, 5", "s_add_u32 s41, s41, s3", "s_lshl_b32 s42, s24, 4", "s_add_u32 s42, s42, 512",
                 "s_lshl_b32 s40, s41, 6", "s_add_u32 s40, s40, s32", "s_lshl_b32 s33, s42, 6", "s_add_u32 s33, s33, s32",
                 "s_lshl_b32 s41, s41, 1", f"v_lshl_add_u32 v{V_CK}, v{V_G2}, 4, s41", "s_lshl_b32 s42, s42, 1", f"v_lshl_add_u32 v{V_CK+1}, v{V_G2}, 4, s42",
                 f"v_and_b32 v{V_OA}, 31, v0", f"v_mul_u32_u24 v{V_OA}, 1152, v{V_OA}", f"v_lshl_add_u32 v{V_OA}, v{V_G2}, 4, v{V_OA}",
                 f"s_mul_i32 s3, s31, {32*1152}", "s_add_u32 s41, s41, s3", "s_add_u32 s42, s42, s3",
                 "s_lshl_b32 s38, s25, 2", "s_add_u32 s38, s38, s26", f"s_mul_i32 s38, s38, {4*49152}", "s_lshl_b32 s3, s27, 12", "s_add_u32 s38, s38, s3",
                 "s_mul_i32 s46, s24, 49152", "s_add_u32 s46, s46, s38"]
    for j in range(1, 4):
        setup_ops += [f"s_xor_b32 s3, s24, {j}", "s_mul_i32 s3, s3, 49152", "s_add_u32 s3, s3, s38", f"s_add_u32 s{63+j}, s3, {PART + (j-1)*16384}", f"s_add_u32 s{66+j}, s46, {PART + (j-1)*16384}"]
    sel_ops = [f"v_and_b32 v{V_T}, 1, v0", f"v_lshlrev_b32 v{V_T}, 4, v{V_T}", f"v_mov_b32 v{SEL}, 0x3f80", f"v_lshlrev_b32 v{V_T}, v{V_T}, v{SEL}", f"v_bfe_u32 v{SEL}, v0, 2, 1",
               f"v_cmp_eq_u32 vcc, v{SEL}, v{V_G2}", f"v_bfe_u32 v{SEL}, v0, 1, 1", f"v_bfe_u32 v{SEL+1}, v0, 3, 2", f"v_cndmask_b32 v{V_T}, 0, v{V_T}, vcc", f"v_lshl_add_u32 v{V_CK+2}, v{SEL+1}, 1, v{SEL}"]
    for r in range(8): sel_ops += [f"v_cmp_eq_u32 vcc, {r}, v{V_CK+2}", "s_nop 1", f"v_cndmask_b32 v{SEL+r}, 0, v{V_T}, vcc"]
    def unp(d, s): return [f"v_lshlrev_b32 v{d}, 16, v{s}", f"v_and_b32 v{d+1}, s39, v{s}"]
    hb_ops = []
    for n in range(NPC):
        hb_ops += [f"v_permlane16_swap_b32 v{HR+4*n}, v{HR+4*n+2}", f"v_permlane16_swap_b32 v{HR+4*n+1}, v{HR+4*n+3}"]
        for b in (BR,): hb_ops += [f"v_permlane32_swap_b32 v{b+4*n}, v{b+4*n+2}", f"v_permlane32_swap_b32 v{b+4*n+1}, v{b+4*n+3}"]
    for pr in range(4 * NPC): hb_ops += unp(HB + 2 * pr, HR + pr)
    for pr in range(4 * NPC):
        t = HR + 2 * (pr % 4)
        hb_ops += unp(t, BR + pr) + [f"v_add_f32 v{HB+2*pr}, v{HB+2*pr}, v{t}", f"v_add_f32 v{HB+2*pr+1}, v{HB+2*pr+1}, v{t+1}"]
    def recv(j, n):
        if n == 3: return [], f"buffer_load_dword v{RXJ[j]+12}, v{V_L4}, s[8:11], s{66+j} offen offset:3072 sc1"
        r = RXJ[j] + 4 * n
        return [], f"buffer_load_dwordx4 v[{r}:{r+3}], v{V_L16}, s[8:11], s{66+j} offen offset:{1024*n} sc1"
    pool = []
    xt = lambda s: max(first_use[("x", s)] - 2, 0)
    for s in range(NX0, 36): pool.append([lambda i, s=s: s < XRING or i >= first_use[("x", s - XRING)], xt(s), xload(s), ("x", s), 1.0])
    xat = {xt(s): s for s in range(1, 36)}
    for st in range(ND0, 27):
        for m in range(6): pool.append([lambda i, st=st: st <= state["free"], min(stage_start[st] - P - 0.5, last_of_tile[3] + 2 - OPT["DLS"] * (26 - st) if OPT["DLS"] else 999) + 0.01 * m, dma(st, m), ("d", st), 1.0])
    for n in range(NP):
        pool.append([lambda i, n=n: n < 3 or i > 72 * (n - 1) + 4, 50 + 72 * n, ([], f"buffer_load_dwordx4 v[{AUGR+4*(n%3)}:{AUGR+4*(n%3)+3}], v{V_L16}, s[8:11], s{33 if n < 4 else 50} offen offset:{1024*(n%4)} sc1"), ("aug", n), 1.0])
    def dload(kap, sreg):
        r = OWN + 4 * (kap - K5)
        return f"buffer_load_dwordx4 v[{r}:{r+3}], v{V_L16}, s[8:11], s{sreg} offen offset:{1024*(kap%4)} sc1"
    dck = lambda g, sreg: f"buffer_load_dword v{ckreg(g)}, v{V_PT}, s[8:11], s{sreg} offen sc1"
    dver = lambda g: [f"v_bitop3_b32 v{ckreg(g)}, v{ckreg(g)}, v{OWN+16*g+2*k}, v{OWN+16*g+2*k+1} bitop3:0x96" for k in range(8)] + [f"v_cmp_ne_u32 s[56:57], s{S_NON}, v{ckreg(g)}"]
    tver = {}
    for kap in range(K5, 72):
        g = (kap - K5) // 4; tv = first_use[("k", K5 + 4 * g)] - 6; tver[tv] = g
        rdy = lambda i: 5 in PUBT and i >= PUBT[5] + OPT["DMG"] and not any(x[3][0] == "k" for x in pool)
        pool.append([rdy, tv - 1 + 0.01 * kap, (hload(kap)[0], dload(kap, S_H)), ("D", g), 1.0])
        if kap % 4 == 3: pool.append([rdy, tv - 1 + 0.01 * kap + 0.005, ([], dck(g, S_H)), ("D", g), 1.0])
    for kap in range(NOWN, K5):
        pool.append([lambda i, kap=kap: need_lvl(*order[kap]) <= state["lvl"] and (kap - NOWN < 28 or i >= g1_end - 72 + 2 * (kap - NOWN - 28) + 4), first_use[("k", kap)], hload(kap), ("k", kap), 1.0])
    for k in range(3 * OPT["SPLIT"]): pool.append([lambda i: 0 in PUBT and i >= PUBT[0] + OPT["SMG"] + (10 if T == "C" else 0), 30 + 0.1 * k, ([], sload(k)), ("sl", 0), 1.0])
    t_set = stage_start[NS1 + 3]; t_hb = stage_start[21]
    for n in range(NPC):
        pool.append([lambda i: state["res"], t_hb - 40, ([], f"buffer_load_dwordx4 v[{HR+4*n}:{HR+4*n+3}], v{V_XA}, s[8:11], s{40 if n < 2 else 33} offen offset:{(n%2)*1024}"), ("res", 0), 1.0])
        pool.append([lambda i: state["res"], t_hb - 40, ([], f"global_load_dwordx4 v[{BR+4*n}:{BR+4*n+3}], v{V_CK if n < 2 else V_CK+1}, s[4:5] offset:{(n%2)*32}"), ("res", 0), 1.0])
    rlist = [(j, n) for j in (2, 3, 1) for n in list(range(NPC)) + [3]]
    for j, n in rlist: pool.append([lambda i, j=j: i >= tail0 + (L1 if j == 1 else L1A) and not aq and sent[j] == NPC, 700, recv(j, n), ("rcv", j), 1.0])
    pool.sort(key=lambda x: x[1])
    staged = [None]
    def pick(i, force=False):
        if OPT["BATCH"] and not force:
            first = next((x for x in pool if x[0](i)), None)
            if first is not None and first[3][0] == "d" and first[1] - i > OPT["DSL"]:
                x = next((x for x in pool if x[3][0] == "k"), None)
                if x is not None and x[0](i): pool.remove(x); return x
        for x in pool:
            if force and x[1] > i + 0.9: return None
            if x[0](i):
                if x[3][0] == "s": state["lst"] = i
                pool.remove(x); return x
        return None
    def fire(x, setup=True):
        if (OPT["NOST"] and x[3][0] == "s") or (OPT["NOH"] and x[3][0] == "k") or (OPT["NOX"] and x[3][0] == "rcv"):
            if len(x) > 5 and x[5]: x[5]()
            return
        if setup:
            for l in x[2][0]: e(l)
        e(x[2][1]); note(x[3], x[4], store=(x[3][0] == "s"))
        if len(x) > 5 and x[5]: x[5]()
    def force(i):
        if staged[0] is not None and (staged[0][1] <= i + 0.9 or any(x[1] <= i + 0.9 and x[0](i) for x in pool[:40])): fire(staged[0], False); staged[0] = None
        while True:
            x = pick(i, True)
            if x is None: break
            fire(x)
    pend = None
    if FUSE:
        a(f"s_and_b32 s3, s2, 7\ns_lshl_b32 s3, s3, 12\ns_add_u32 s3, s3, {FLB}\ns_mov_b32 s50, 0\ns_cmp_lt_u32 s2, 144\ns_cbranch_scc1 K3{T}_pl")
        a(f"s_cmp_lg_u32 s27, 0\ns_cbranch_scc1 K3{T}_qk\ns_sub_u32 s56, s2, 144\ns_lshl_b32 s56, s56, 4\ns_add_u32 s56, s56, s3\nK3{T}_ql:\nbuffer_load_dword v57, v{V_ZERO}, s[8:11], s56 offen sc1\ns_add_u32 s50, s50, 1\ns_waitcnt vmcnt(0)")
        a(f"v_cmp_ne_u32 vcc, s{S_NON}, v57\ns_cbranch_vccz K3{T}_qk\ns_sleep 4\ns_cmp_lt_u32 s50, 20000\ns_cbranch_scc1 K3{T}_ql\nK3{T}_qk:\ns_barrier")
        a(f"K3{T}_pl:\nbuffer_load_dword v60, v56, s[8:11], s3 offen sc1\ns_add_u32 s50, s50, 1\ns_waitcnt vmcnt(0)")
        a(f"v_cmp_ne_u32 vcc, s{S_NON}, v60\ns_cbranch_vccz K3{T}_pk\ns_sleep {OPT['SLP']}\ns_cmp_lt_u32 s50, 20000\ns_cbranch_scc1 K3{T}_pl\nK3{T}_pk:\ns_barrier")
        if STAMP: a("s_memtime s[60:61]\ns_memrealtime s[56:57]\ns_waitcnt lgkmcnt(0)\ns_mov_b32 s99, s58\ns_mov_b32 s101, s56")
        for s in range(NX0):
            for x in xload(s)[0]: a(x)
            a(xload(s)[1])
    else:
        vwait(("d", 0)); a("s_barrier")
    a(f"s_add_u32 s50, s33, 4096\n; @beg{T}")
    if STAMP: a("s_memtime s[62:63]")
    for i in range(P): wread(i)
    acquired = 0
    vwait(("x", 0)); xq = xfix(0)
    CAP = OPT["CAP"]
    for i in range(NM):
        cur[0] = i
        m = M[i]; st = m["st"]; nxt = i + P
        force(i - 1)
        if nxt < NM and M[nxt]["st"] > acquired:
            acquired = M[nxt]["st"]; s = acquired - 1
            vwait(("d", acquired)); e("s_barrier"); sim["now"] += 30
            if STAMP: a(f"s_mov_b32 s{70+s}, s62\ns_memtime s[62:63]")
            state["free"] = s + 5
        if OPT["XB"] and i == stage_start[21] + 2:
            e("s_barrier"); state["free"] = 26
        CAP = 9 if 24 <= i < 40 else OPT["CAPL"] if g1_end <= i < g1_end + 48 or i > 500 else OPT["CAP"]
        if i == 24 and T == "B" and OPT["SPLIT"]:
            for x in stats_part(): aq.append((i + 1, x))
            aq.append((i + 1, ([], f"buffer_store_dwordx3 v[{STT}:{STT+2}], v{STT+31}, s[8:11], s46 offen sc1", ("ss", 0), 1.0, lambda: PUBT.__setitem__(0, cur[0]))))
        if OPT["SPLIT"] and state["sv"] is None and not any(x[3][0] == "sl" for x in pool) and not (staged[0] and staged[0][3][0] == "sl"): state["sv"] = max(i + OPT["SVD"], 74)
        if i == state["sv"]:
            vwait(("sl", 0))
            for x in sver + [f"s_cmp_lg_u64 s[56:57], 0\ns_cbranch_scc1 K3{T}_sr\nK3{T}_sk:"] + stats_final() + ["AUG"]: aq.append((i, x))
        if i == t_set:
            for x in setup_ops[:13] + ["RES"] + setup_ops[13:] + sel_ops: aq.append((i, x))
        if state["hb"] is None and state["res"] and not any(x[3][0] == "res" for x in pool) and not (staged[0] and staged[0][3][0] == "res"): state["hb"] = i + 36
        if i == state["hb"]:
            vwait(("res", 0))
            for x in hb_ops: aq.append((i, x))
        kind, kk = m["b"]
        if kind == "x":
            bop = f"a[{4*kk}:{4*kk+3}]"
            if first_use[m["b"]] == i:
                for o in xq: e(o)
                xq.clear()
        elif kk < NOWN:
            bop = f"v[{OWN+4*kk}:{OWN+4*kk+3}]"
            if kk >= NOWN - 4 and first_use[m["b"]] == i: flush_aq()
        elif kk >= K5:
            if first_use[m["b"]] == i:
                for o in xq: e(o)
                xq.clear()
            bop = f"v[{OWN+4*(kk-K5)}:{OWN+4*(kk-K5)+3}]"
        else:
            if first_use[m["b"]] == i:
                assert OPT["NOH"] or need_lvl(*order[kk]) <= state["lvl"], (T, kk, i)
                force(i); vwait(("k", kk))
            bop = f"a[{hreg(kk)}:{hreg(kk)+3}]"
        if i in xat: force(i); vwait(("x", xat[i])); xq += xfix(xat[i])
        if i in tver:
            g = tver[i]; force(i)
            assert pend is None and not polls and not any(x[3] == ("D", g) for x in pool), (T, i, g)
            vwait(("D", g)); xq += dver(g) + [f"s_cmp_lg_u64 s[56:57], 0\ns_cbranch_scc1 K3{T}_dr{g}\nK3{T}_dk{g}:"]
        chk = pend is not None and i >= pend[0] and i % 2 == 0
        if i % 2 == 0: e(f"s_waitcnt lgkmcnt({0 if chk else max((min(nxt, NM) - i - 2) * RPF, 0)})")
        sim["now"] += OPT["GAP"] + 4 * max(0, cnt[0] - 5)
        r = WQ[i % NA]; c = m["acc"]
        a(f"v_mfma_f32_32x32x16_bf16 v[{c}:{c+15}], v[{r}:{r+3}], {bop}, {'0' if m['first'] else f'v[{c}:{c+15}]'}")
        cnt[0] = 1 if (i % 2 == 1) else 0
        didv = False
        if staged[0] is not None: fire(staged[0], False); staged[0] = None; didv = True
        elif aq and aq[0][0] <= i and isinstance(aq[0][1], tuple): do_store(aq.pop(0)[1]); didv = True
        elif pubq and i >= pubq[0][0]:
            p = pubq.pop(0)[1]
            vwait(("s", p))
            e(f"buffer_store_dword v{V_NON}, v{V_ZERO}, s[8:11], s37 offen offset:{128*(p+1)}{HS}"); note(("flag", 0), 1.0, store=True)
            if OPT["PT"]:
                for pp in ([p] if T == "B" else range(3)):
                    pool.append([lambda i: True, i + 6 + 4 * pp * (T == "C"), ([f"s_add_u32 s50, s47, {pp*262144}"], f"buffer_load_dword v{V_FL}, v{V_PT}, s[8:11], s50 offen"), ("pt", 0), 2.0]); pool.sort(key=lambda x: x[1])
            if T == "B": PUBT[p + 1] = i
            didv = True
        if didv: cnt[0] += 1
        if nxt < NM: wread(nxt)
        for _ in range(3):
            if xq: e(xq.pop(0))
        if chk: poll_check(pend[1]); state["lvl"] = pend[1]; pend = None
        if pend is None and polls and polls[0] in PUBT and i >= PUBT[polls[0]] + OPT["MG"]:
            e(f"s_load_dwordx4 s[56:59], s[8:9], s36 offset:{128*polls[0]} glc"); pend = (i + OPT["POLLD"], polls.pop(0))
        if (st == 0 and T == "B") if OPT["SPLIT"] else (m["g1"] and G1ORD[st][0] == 0):
            xr = 4 * kk
            if i % 2 == 0:
                a(f"v_mfma_f32_16x16x32_bf16 v[{STT}:{STT+3}], v[{STT+12}:{STT+15}], a[{xr}:{xr+3}], {'0' if kk == 0 else f'v[{STT}:{STT+3}]'}")
            else:
                for h in range(2):
                    d = STT + 4 + 4 * h
                    a(f"v_mfma_f32_4x4x4_16b_bf16 v[{d}:{d+3}], a[{xr+2*h}:{xr+2*h+1}], a[{xr+2*h}:{xr+2*h+1}], {'0' if kk == 0 else f'v[{d}:{d+3}]'}")
            sim["now"] += 18
            if room():
                x = pick(i)
                if x: fire(x)
        st_next = aq and isinstance(aq[0][1], tuple) and aq[0][0] <= i + 1
        pub_next = pubq and i + 1 >= pubq[0][0]
        if not st_next and not pub_next and room(OPT["GAP"]):
            x = pick(i)
            if x:
                for l in x[2][0]: e(l)
                staged[0] = x
        while aq and aq[0][0] <= i and (aq[0][1][0] == "POOL" or (isinstance(aq[0][1], str) and cnt[0] < CAP)):
            o = aq.pop(0)[1]
            if o[0] == "POOL": to_pool(o)
            elif o == "AUG": do_aug(0); state["aug0"] = True
            elif o == "RES": state["res"] = True
            else: e(o)
        if i % 2 == 1: cnt[0] -= 1
        if m["g1"] and G1ORD[st][1] == 2 and i % 24 == 23:
            p = G1ORD[st][0]
            if p >= 2: flush_aq()
            if p == 0 and not OPT["SPLIT"]:
                for x in stats_part()[:-1] + stats_final() + ["AUG"]: aq.append((i + 2, x))
            if p > 0:
                assert state["aug0"]; do_aug(p)
        if not m["g1"] and last_of_tile[m["tile"]] == i:
            t = m["tile"]
            assert state["hb"] is not None and state["hb"] < i
            if t in (1, 2, 3): send(treg(t), t, 0, i + 3); send(treg(t) + 8, t, 1, i + 3)
            elif t == 4: send(treg(4) + 8, 1, 2, i + 3)
            elif t == 5: send(treg(5), 2, 2, i + 3); send(treg(5) + 8, 3, 2, i + 3)
    force(10**6)
    assert not aq and not pool and pend is None and not polls and not pubq and staged[0] is None, (len(aq), len(pool), pend, polls, pubq)
    print(f"  K3{T}: model end {sim['now']:.0f}, blocks {sim['blk']}, pub {PUBT}")
    a(f"; @end{T}")
    if STAMP: a("s_memtime s[58:59]")
    a("s_mov_b32 s51, 0")
    for j in (2, 3, 1):
        r = RXJ[j]
        vwait(("rcv", j))
        a(f"K3{T}_chk{j}:")
        a(f"v_bitop3_b32 v{r+13}, v{r}, v{r+1}, v{r+2} bitop3:0x96\nv_bitop3_b32 v{r+12}, v{r+12}, v{r+3}, v{r+4} bitop3:0x96\nv_bitop3_b32 v{r+13}, v{r+13}, v{r+5}, v{r+6} bitop3:0x96")
        if T == "C": a(f"v_bitop3_b32 v{r+12}, v{r+12}, v{r+8}, v{r+9} bitop3:0x96\nv_bitop3_b32 v{r+13}, v{r+13}, v{r+10}, v{r+11} bitop3:0x96")
        a(f"v_bitop3_b32 v{r+12}, v{r+12}, v{r+13}, v{r+7} bitop3:0x96\nv_cmp_ne_u32 vcc, s{S_NON}, v{r+12}\n{'s_nop 0' if OPT['NOX'] else f's_cbranch_vccnz K3{T}_rt{j}'}\nK3{T}_go{j}:")
        for n in ([2] if T == "C" else []) + [0, 1]:
            c = treg(4 if n == 2 else 0); sl = SEL + 4 * (n & 1)
            a(f"v_mfma_f32_32x32x16_bf16 v[{c}:{c+15}], v[{sl}:{sl+3}], v[{r+4*n}:{r+4*n+3}], v[{c}:{c+15}]")
    if STAMP: a("s_memtime s[56:57]")
    for n in ([2] if T == "C" else []) + [0, 1]:
        O = HR + 4 * n
        for pr in range(4 * n, 4 * n + 4):
            c = own_regs[pr // 2] + 2 * (pr % 2)
            a(f"v_fma_f32 v{c}, v{c}, v{V_RS}, v{HB+2*pr}\nv_fma_f32 v{c+1}, v{c+1}, v{V_RS}, v{HB+2*pr+1}")
        for pr in range(4 * n, 4 * n + 4):
            c = own_regs[pr // 2] + 2 * (pr % 2)
            a(f"v_cvt_pk_bf16_f32 v{HR+pr}, v{c}, v{c+1}")
        a(f"v_permlane32_swap_b32 v{O}, v{O+2}\nv_permlane32_swap_b32 v{O+1}, v{O+3}")
        a(f"buffer_store_dwordx4 v[{O}:{O+3}], v{V_OA}, s[20:23], s{41 if n < 2 else 42} offen offset:{32*(n%2)}")
    if STAMP:
        a("s_memtime s[44:45]\ns_waitcnt lgkmcnt(0)")
        lst = [70 + k for k in range(26)] + [62, 62, 58, 56, 44]
        for k, r in enumerate(lst): a(f"s_sub_u32 s3, s{r}, s60\nv_writelane_b32 v10, s3, {k}")
        a(f"v_writelane_b32 v10, s53, 31\nv_writelane_b32 v10, s51, 32\nv_writelane_b32 v10, s60, 33")
        a(f"s_lshl_b32 s3, s2, 10\ns_lshl_b32 s7, s27, 8\ns_add_u32 s3, s3, s7\ns_add_u32 s3, s3, {WSZ - 262144}\nv_lshlrev_b32 v9, 2, v0\nbuffer_store_dword v10, v9, s[8:11], s3 offen")
    rt_end(a, 2, [100, 99, 101])
    a("s_endpgm")
    for j in (1, 2, 3):
        a(f"K3{T}_rt{j}:\ns_add_u32 s51, s51, 1\ns_cmp_gt_u32 s51, 20000\ns_cbranch_scc1 K3{T}_go{j}")
        for n in list(range(NPC)) + [3]: a(recv(j, n)[1])
        a(f"s_waitcnt vmcnt(0)\ns_branch K3{T}_chk{j}")
    for g in range((72 - K5) // 4):
        sb, off = hbase(*order[K5 + 4 * g])
        a(f"K3{T}_dr{g}:\ns_mov_b32 s59, 0\ns_add_u32 s53, s53, 10000\ns_add_u32 s58, s{sb}, {off}\nK3{T}_dl{g}:")
        for kap in range(K5 + 4 * g, K5 + 4 * g + 4): a(dload(kap, 58))
        a(dck(g, 58)); a("s_add_u32 s59, s59, 1\ns_waitcnt vmcnt(0)")
        for o in dver(g): a(o)
        a(f"s_cmp_gt_u32 s59, 20000\ns_cbranch_scc1 K3{T}_dk{g}\ns_cmp_lg_u64 s[56:57], 0\ns_cbranch_scc1 K3{T}_dl{g}\ns_branch K3{T}_dk{g}")
    if OPT["SPLIT"]:
        a(f"K3{T}_sr:\ns_mov_b32 s59, 0\ns_add_u32 s53, s53, 100000\nK3{T}_sl:")
        for k in range(3): a(sload(k))
        a("s_add_u32 s59, s59, 1\ns_waitcnt vmcnt(0)")
        for o in sver: a(o)
        a(f"s_cmp_gt_u32 s59, 20000\ns_cbranch_scc1 K3{T}_sk\ns_cmp_lg_u64 s[56:57], 0\ns_cbranch_scc1 K3{T}_sl\ns_branch K3{T}_sk")
    for lvl in slow:
        a(f"K3{T}_slow{lvl}:\ns_mov_b32 s58, 0\ns_add_u32 s53, s53, {10**(lvl-1)}\nK3{T}_sl{lvl}:")
        a(f"buffer_load_dword v{V_FL}, v{V_L4}, s[8:11], s36 offen offset:{128*lvl} sc1\ns_add_u32 s58, s58, 1\ns_waitcnt vmcnt(0)")
        a(f"v_cmp_ne_u32 s[56:57], s{S_NON}, v{V_FL}\ns_cmp_gt_u32 s58, 20000\ns_cbranch_scc1 K3{T}_back{lvl}\ns_and_b32 s56, s56, {15 if withC(lvl) else 7}\ns_cbranch_scc1 K3{T}_sl{lvl}\ns_branch K3{T}_back{lvl}")
```

```python
from asmlib import *
from layout import *
import struct, os
def fhex(x): return "0x%08x" % struct.unpack("<I", struct.pack("<f", x))[0]
KO = dict(PUBK=4, POLLK=14, CHKK=16, LATE=0, XT=1, WSP=5, PL=8, AR1=8, RR=80, LW=8, VSP=5, PF0=110, W2D=0, PW=0, PWO=0, PWS=1)
for k in KO:
    if os.environ.get(k): KO[k] = int(os.environ[k])

TS = 30144
RS = 528
PS = 8256
L_P = 4 * TS - 4 * PS
L_KC = L_P - 4 * 1600
L_UX = 4 * TS + 4096
L_LN = L_UX
KF_LDS = L_UX + 32768
LNS = 1216
VA = 224
VB = 232
V_EU = 236; V_EX = 237; V_HS = 238; V_TW = 239; V_TR = 240
V_C0 = 241; V_C1 = 242; V_C2 = 243; V_C3 = 244; V_R0 = 245; V_R1 = 246; V_P4 = 247; V_P5 = 248; V_P6 = 249
V_FP = 250; V_L16 = 251; V_FT = 252; V_FS = 253; V_Z = 254; V_PZ = 255; V_RP = 223; V_SEL = 184

def pf_setup(a):
    a("v_and_b32 v5, 63, v0\nv_lshrrev_b32 v6, 3, v5\ns_lshl_b32 s60, s7, 4\nv_add_u32 v6, s60, v6\nv_bfe_u32 v7, v5, 4, 1\nv_lshlrev_b32 v7, 2, v7\nv_and_b32 v5, 7, v5\nv_xor_b32 v5, v5, v7")
    a(f"v_mul_u32_u24 v6, 9216, v6\nv_lshl_add_u32 v6, v5, 4, v6\nv_add_u32 v7, {8*9216-1024}, v6")
    a(f"s_and_b32 s60, s2, 3\ns_mul_i32 s60, s60, 2304\ns_bfe_u32 s61, s2, 0x20003\ns_mul_i32 s61, s61, 640\ns_add_u32 s60, s60, s61\ns_lshl_b32 m0, s7, 11\ns_mov_b32 s61, {64*9216}\ns_mov_b32 s50, {576*9216}\ns_mov_b32 s51, 0x20000")
def w2_setup(a, aux):
    a(f"s_and_b32 s47, s2, 3\ns_lshl_b32 s47, s47, 1\ns_bfe_u32 s54, s2, 0x10002\ns_add_u32 s47, s47, s54\ns_mul_i32 s47, s47, {5184*128}\ns_lshr_b32 s54, s2, 3")
    if aux: a(f"s_mul_i32 s54, s54, {42*128}\ns_add_u32 s54, s54, {(4608-18*42)*128}")
    else: a("s_lshl_b32 s54, s54, 15\nv_lshlrev_b32 v59, 7, v0")
    a(f"s_add_u32 s47, s47, s54\ns_mov_b32 s54, {4608*1152}\ns_mov_b32 s55, 0x20000")
def pf_ops():
    o = []
    for k in range(9):
        o += ["buffer_load_dwordx4 v6, s[48:51], s60 offen lds", "buffer_load_dwordx4 v7, s[48:51], s60 offen offset:1024 lds\ns_addk_i32 m0, 0x2000\ns_add_u32 s60, s60, s61"]
    return o

def gen_kf(a):
    nm = KNAME if FUSE else "kf_kernel"
    SC = " sc1" if FUSE else ""
    END = "s_branch K3_entry" if FUSE else "s_endpgm"
    a(f".globl {nm}\n.p2align 8\n.type {nm},@function\n{nm}:")
    a("s_cmp_ge_u32 s2, 256\ns_cbranch_scc1 KF_end")
    a("s_load_dwordx16 s[16:31], s[0:1], 0\ns_load_dwordx2 s[8:9], s[0:1], 112\ns_load_dwordx4 s[48:51], s[0:1], 64\ns_load_dwordx2 s[52:53], s[0:1], 80\ns_load_dwordx2 s[56:57], s[0:1], 88")
    rt_begin(a, 70)
    a("s_getpc_b64 s[40:41]\nv_lshlrev_b32 v59, 6, v0\nglobal_load_dword v58, v59, s[40:41] offset:512")
    a("v_lshrrev_b32 v2, 5, v0\nv_and_b32 v3, 31, v0\nv_lshrrev_b32 v4, 6, v0\nv_and_b32 v1, 63, v0")
    a("s_mul_i32 s6, s2, 9216\nv_mul_u32_u24 v5, 1152, v2\nv_lshl_add_u32 v5, v3, 2, v5\nv_add_u32 v5, s6, v5")
    a("v_readfirstlane_b32 s7, v4")
    a("s_and_b32 s3, s2, 7\ns_mul_i32 s3, s3, 18\ns_lshr_b32 s6, s2, 3\ns_add_u32 s3, s3, s6")
    a("s_lshl_b32 s13, s3, 2\ns_add_u32 s13, s13, s7\ns_min_u32 s13, s13, 575")
    a("s_lshl_b32 s6, s13, 8\nv_lshl_add_u32 v6, v1, 2, s6\ns_lshl_b32 s6, s13, 1\nv_mov_b32 v7, s6")
    a("s_waitcnt lgkmcnt(0)")
    for k in range(9): a(f"global_load_dword v{10+k}, v5, s[16:17] offset:{128*k}")
    a(f"s_mov_b32 s6, {NONCE}\ns_load_dword s14, s[8:9], s6")
    a("global_load_ushort v60, v7, s[26:27]\nglobal_load_dword v61, v6, s[18:19]\nglobal_load_dword v62, v6, s[20:21]\nglobal_load_dword v63, v6, s[22:23]\nglobal_load_dword v64, v6, s[24:25]\nglobal_load_ushort v65, v7, s[28:29]")
    a(f"s_mov_b32 s10, {WSZ}\ns_mov_b32 s11, 0x20000\ns_mov_b32 s12, 0xffff0000")
    a(f"v_mul_u32_u24 v8, {LNS}, v2\nv_lshl_add_u32 v8, v3, 2, v8\nv_add_u32 v8, {L_LN}, v8")
    a(f"v_bfe_u32 v44, v0, 2, 2\nv_bfe_u32 v40, v0, 5, 1\nv_lshl_add_u32 v9, v40, 3, v44\nv_mul_u32_u24 v9, {LNS}, v9")
    a(f"v_and_b32 v41, 3, v0\nv_lshl_add_u32 v9, v41, 3, v9\nv_and_b32 v42, 16, v0\nv_lshl_add_u32 v9, v42, 1, v9\nv_lshl_add_u32 v9, v4, 6, v9\nv_add_u32 v9, {L_LN}, v9")
    a("v_lshl_add_u32 v45, v40, 2, v41\ns_bfe_u32 s6, s2, 0x30001\nv_xor_b32 v45, s6, v45\nv_lshrrev_b32 v43, 2, v3\nv_lshl_add_u32 v43, v4, 3, v43\nv_lshlrev_b32 v43, 15, v43\nv_lshl_add_u32 v43, v45, 4, v43")
    a(f"s_lshl_b32 s15, s2, 7\nv_mov_b32 v52, 0\ns_lshl_b32 s43, s2, 4\ns_add_u32 s43, s43, {FLA}\nv_lshlrev_b32 v{V_FP}, 4, v0\nv_lshlrev_b32 v{V_L16}, 4, v1\nv_lshlrev_b32 v53, 12, v0\nv_and_b32 v{V_RP}, 0x7000, v53")
    def conv_setup():
        a('v_bfe_u32 v44, v0, 2, 2')
        a(f"s_mul_i32 s36, s7, {TS}\ns_mul_i32 s35, s7, 1600\ns_add_u32 s35, s35, {L_KC+16}\nv_and_b32 v46, 15, v1\nv_lshrrev_b32 v47, 4, v1")
        a(f"v_lshl_add_u32 v{V_TW}, v1, 3, s36\nv_mul_u32_u24 v48, {RS}, v46\nv_lshl_add_u32 v48, v47, 4, v48\nv_add_u32 v{V_TR}, s36, v48\ns_mul_i32 s36, s7, {PS}\ns_add_u32 s36, s36, {L_P}")
        a(f"v_lshl_add_u32 v{V_PZ}, v46, 2, s36\nv_lshlrev_b32 v48, 5, v47\nv_sub_u32 v48, v{V_PZ}, v48")
        for q in range(8): a(f"v_add_u32 v{VA+q}, {104+1024*q}, v48")
        a("v_lshl_add_u32 v48, v46, 1, v47")
        for k in range(4):
            a(f"v_add_u32 v49, {30-4*k}, v48\nv_bfe_u32 v50, v49, 1, 3\nv_xor_b32 v50, s7, v50\nv_lshlrev_b32 v49, 7, v49\nv_lshl_add_u32 v49, v50, 4, v49\nv_add_u32 v{VB+k}, {L_UX-4096-2048}, v49")
        a("v_lshl_add_u32 v49, v46, 1, v40\nv_and_b32 v50, 7, v46\nv_xor_b32 v50, s7, v50\nv_lshlrev_b32 v49, 7, v49\nv_lshl_add_u32 v49, v50, 4, v49")
        a(f"v_and_b32 v50, 1, v47\nv_lshl_add_u32 v49, v50, 3, v49\nv_add_u32 v{V_EU}, {L_UX}, v49\nv_xor_b32 v{V_EX}, 64, v{V_EU}")
        a(f"v_lshlrev_b32 v49, 5, v46\nv_lshl_add_u32 v49, v47, 3, v49\nv_add_u32 v{V_HS}, s36, v49")
        a(f"v_lshlrev_b32 v49, 8, v40\nv_lshl_add_u32 v49, v46, 4, v49\nv_lshl_add_u32 v49, v50, 3, v49\nv_add_u32 v{V_C0}, s35, v49")
        a(f"v_lshl_add_u32 v49, v47, 7, s35\nv_cmp_lt_u32 vcc, 31, v1\nv_lshlrev_b32 v50, 3, v46\nv_lshlrev_b32 v51, 2, v46\nv_cndmask_b32 v50, v50, v51, vcc\nv_add_u32 v{V_C1}, v50, v49")
        a(f"v_mov_b32 v50, 4\nv_mov_b32 v51, 64\nv_cndmask_b32 v50, v50, v51, vcc\nv_add_u32 v{V_C2}, v50, v{V_C1}\nv_lshl_add_u32 v{V_C3}, v46, 1, v49")
        a(f"s_sub_u32 s6, s35, 4\nv_mov_b32 v{V_Z}, s6\nv_lshl_add_u32 v{V_R0}, v1, 3, s6\nv_lshl_add_u32 v{V_R1}, v1, 2, s6")
        a(f"v_lshl_add_u32 v{V_P4}, v1, 4, s36\nv_lshlrev_b32 v{V_FP}, 4, v0\nv_lshlrev_b32 v{V_L16}, 4, v1")
        a(f"v_mul_u32_u24 v49, {PS}, v44\nv_add_u32 v49, {L_P}, v49\nv_lshl_add_u32 v49, v41, 3, v49\nv_lshl_add_u32 v49, v47, 6, v49\nv_lshl_add_u32 v{V_FT}, v4, 10, v49")
        a(f"v_mul_u32_u24 v49, 36864, v47\nv_lshl_add_u32 v{V_FS}, v46, 4, v49")
        a(f"s_lshl_b32 s42, s3, 8\ns_mul_i32 s6, s7, {16*36864}\ns_add_u32 s42, s42, s6\ns_add_u32 s42, s42, {HP8}")
        a(f"s_lshl_b32 s38, s3, 15\ns_lshl_b32 s39, s7, 13\ns_add_u32 s38, s38, s39\ns_add_u32 s39, s39, {L_UX}\ns_and_b32 s34, s2, 7\ns_lshl_b32 s34, s34, 12\ns_add_u32 s34, s34, {FLA}")
        a(f"v_lshrrev_b32 v49, 1, v1\nv_lshl_add_u32 v{V_P5}, v49, 2, s35\nv_and_b32 v49, 60, v1\nv_add_u32 v49, 1024, v49\nv_add_u32 v{V_P6}, s35, v49\nv_mov_b32 v56, 0x100\ns_movk_i32 s60, 0x202")
        for reg, (mask, idx) in enumerate(((3, lambda e: (e >= 5) + (e >= 12)), (1, lambda e: (e >= 3) + (e >= 6)))):
            tb = sum(idx(e) << (2 * e) for e in range(16 if mask == 3 else 8))
            a(f"v_and_b32 v49, {mask}, v1\nv_lshlrev_b32 v49, 3, v49\nv_lshrrev_b32 v50, v49, {hex(tb)}" .replace(f"v_lshrrev_b32 v50, v49, {hex(tb)}", f"v_mov_b32 v50, {hex(tb)}\nv_mov_b32 v51, {hex((tb << 2) & 0xffffffff)}\nv_lshrrev_b32 v50, v49, v50\nv_lshrrev_b32 v51, v49, v51"))
            a("v_and_b32 v51, 3, v51\nv_mad_u32_u24 v51, v51, s60, v56")
            for o in range(4):
                a(f"v_bfe_u32 v57, v50, {2*o}, 2\nv_mad_u32_u24 v57, v57, s60, v56\nv_lshl_or_b32 v{V_SEL+4*reg+o}, v51, 16, v57\nv_mov_b32 v51, v57")
        a("s_mov_b32 s44, 0x07060100\ns_mov_b32 s45, 0x01000100\ns_mov_b32 s46, 0x03020302")
        a(f"v_mov_b32 v52, 0\nv_mov_b32 v53, 0\nv_mov_b32 v54, 0\nv_mov_b32 v55, 0\nv_add_u32 v49, {L_UX-4096}, v{V_FP}\nds_write_b128 v49, v[52:55]")
        a(f"v_mov_b32 v56, 0x3c00\nv_mov_b32 v57, 0x3c00\nds_write_b64 v{V_TW}, v[56:57] offset:{16*RS}")
    if not KO['LATE']: conv_setup()
    for k in range(9):
        a(f"s_waitcnt vmcnt({14-k})")
        a(f"ds_write_b32 v8, v{10+k} offset:{8*LNS+128*k}")
        a(f"v_lshlrev_b32 v{20+2*k}, 16, v{10+k}\nv_and_b32 v{21+2*k}, s12, v{10+k}")
        if k == 1: a("v_pk_add_f32 v[44:45], v[20:21], v[22:23]")
        elif k > 1: a(f"v_pk_add_f32 v[44:45], v[44:45], v[{20+2*k}:{21+2*k}]")
    def red32(v):
        for s in (8, 4, 2, 1): a(f"v_add_f32_dpp v{v}, v{v}, v{v} row_ror:{s} row_mask:0xf bank_mask:0xf")
        a(f"v_mov_b32 v{v+1}, v{v}\nv_permlane16_swap_b32 v{v}, v{v+1}\nv_add_f32 v{v}, v{v}, v{v+1}")
    a("v_add_f32 v44, v44, v45"); red32(44)
    a(f"v_mul_f32 v44, {fhex(-1.0/576)}, v44")
    for k in range(9): a(f"v_pk_add_f32 v[{80+2*k}:{81+2*k}], v[{20+2*k}:{21+2*k}], v[44:45] op_sel_hi:[1,0]")
    for k in range(9):
        t = 80 + 2 * k
        if k == 0: a(f"v_pk_mul_f32 v[46:47], v[{t}:{t+1}], v[{t}:{t+1}]")
        else: a(f"v_pk_fma_f32 v[46:47], v[{t}:{t+1}], v[{t}:{t+1}], v[46:47]")
    a("v_add_f32 v46, v46, v47\nv_cvt_pk_bf16_f32 v44, v44, v44\nv_and_b32 v44, s12, v44")
    sub = [f"v_pk_add_f32 v[{20+2*k}:{21+2*k}], v[{20+2*k}:{21+2*k}], v[44:45] op_sel_hi:[1,0]" for k in range(9)] + [f"v_cvt_pk_bf16_f32 v{21+2*k}, v{20+2*k}, v{21+2*k}" for k in range(9)]
    for k in range(9): sub += [f"v_lshlrev_b32 v{20+2*k}, 16, v{21+2*k}", f"v_and_b32 v{21+2*k}, s12, v{21+2*k}"]
    chain = [f"v_add_f32_dpp v46, v46, v46 row_ror:{s} row_mask:0xf bank_mask:0xf" for s in (8, 4, 2, 1)] + ["v_mov_b32 v47, v46", "v_permlane16_swap_b32 v46, v47", "v_add_f32 v46, v46, v47",
             f"v_mul_f32 v46, {fhex(1.0/576)}, v46", "v_cvt_pk_bf16_f32 v46, v46, v46", "v_and_b32 v46, s12, v46", f"v_add_f32 v46, {fhex(1e-5)}, v46", "v_cvt_pk_bf16_f32 v46, v46, v46", "v_and_b32 v46, s12, v46",
             "v_sqrt_f32 v46, v46", "v_cvt_pk_bf16_f32 v46, v46, v46", "v_and_b32 v46, s12, v46", "v_rcp_f32 v46, v46"]
    for c in chain:
        a(c); a(sub.pop(0)); a(sub.pop(0))
    for x in sub: a(x)
    for k in range(9): a(f"v_pk_mul_f32 v[{20+2*k}:{21+2*k}], v[{20+2*k}:{21+2*k}], v[46:47] op_sel_hi:[1,0]")
    for k in range(9):
        a(f"v_cvt_pk_bf16_f32 v{20+2*k}, v{20+2*k}, v{21+2*k}\nds_write_b32 v8, v{20+2*k} offset:{128*k}")
    a("s_waitcnt lgkmcnt(0)\ns_barrier")
    for m in range(5):
        a(f"ds_read_b64_tr_b16 v[{20+4*m}:{21+4*m}], v9 offset:{256*m}\nds_read_b64_tr_b16 v[{22+4*m}:{23+4*m}], v9 offset:{256*m+4*LNS}")
    a("s_mul_i32 s14, s14, 0x9e3779b1\ns_add_u32 s14, s14, 0x7f4a7c15\ns_mov_b32 s99, s14")
    for m in range(5):
        if m == 4: a("s_cmp_ge_u32 s7, 2\ns_cbranch_scc1 KF_ln4")
        a(f"s_waitcnt lgkmcnt({8-2*m})\nbuffer_store_dwordx4 v[{20+4*m}:{23+4*m}], v43, s[8:11], s15 offen sc1")
        if m < 4: a(f"s_add_u32 s15, s15, {32*32768}")
    a("KF_ln4:")
    rt_mark(a, 72)
    a("v_mov_b32 v2, s14\ns_cmp_ge_u32 s2, 144\ns_cbranch_scc1 KF_aux")
    if KO['LATE']: conv_setup()
    a("s_waitcnt vmcnt(5) lgkmcnt(0)")
    a(f"v_lshlrev_b32 v60, 16, v60\nv_lshlrev_b32 v66, 16, v61\nv_and_b32 v67, s12, v61\nv_mul_f32 v60, {LOG2E}, v60")
    a("v_lshlrev_b32 v70, 16, v63\nv_lshlrev_b32 v71, 16, v64\nv_and_b32 v72, s12, v63\nv_and_b32 v73, s12, v64")
    a(f"v_mul_f32 v66, {LOG2E}, v66\nv_mul_f32 v67, {LOG2E}, v67\nv_max3_f32 v74, |v70|, |v71|, |v72|\nv_exp_f32 v60, v60\nv_max_f32 v74, v74, |v73|\nv_exp_f32 v66, v66\nv_exp_f32 v67, v67")
    dm = lambda s: f"v_max_f32_dpp v74, v74, v74 row_ror:{s} row_mask:0xf bank_mask:0xf"
    a(dm(8)); a("v_cvt_pk_bf16_f32 v60, v60, v60\nv_cvt_pk_bf16_f32 v67, v66, v67")
    a(dm(4)); a("v_lshlrev_b32 v68, 16, v62\nv_and_b32 v69, s12, v62")
    a(dm(2)); a("v_and_b32 v60, s12, v60\nv_lshlrev_b32 v66, 16, v67")
    a(dm(1)); a("v_and_b32 v67, s12, v67\nv_mov_b32 v75, v74")
    for r in (66, 67): a(f"v_mul_f32 v{r}, v60, v{r}")
    a("v_permlane16_swap_b32 v74, v75\nv_max_f32 v74, v74, v75\nv_mov_b32 v75, v74")
    for r in (68, 69): a(f"v_mul_f32 v{r}, v60, v{r}")
    a("v_permlane32_swap_b32 v74, v75\nv_max_f32 v74, v74, v75")
    a(f"v_mul_f32 v66, {LOG2E | 0x80000000}, v66\nv_mul_f32 v67, {LOG2E | 0x80000000}, v67\nv_mul_f32 v68, 0.15915494, v68\nv_mul_f32 v69, 0.15915494, v69")
    a("v_frexp_exp_i32_f32 v74, v74\nv_sub_u32 v75, 14, v74")
    a("v_ldexp_f32 v70, v70, v75\nv_ldexp_f32 v71, -v71, v75\nv_ldexp_f32 v72, v72, v75\nv_ldexp_f32 v73, -v73, v75")
    a("v_subrev_u32 v74, 13, v74\nv_ldexp_f32 v60, v60, v74")
    Z1, Z8, ZH = 76, 80, 84
    for h in range(2):
        al, be, m = 66 + h, 68 + h, 168 + 4 * h
        a(f"v_mul_f32 v{m+1}, 0x41000000, v{al}\nv_mul_f32 v{m+2}, 0x43000000, v{al}\nv_mul_f32 v{Z8+2*h+1}, 0xc1000000, v{be}\nv_mul_f32 v{ZH+2*h+1}, 0x43000000, v{be}\nv_fract_f32 v{Z1+2*h+1}, v{be}")
        a(f"v_exp_f32 v{m}, v{al}\nv_exp_f32 v{m+1}, v{m+1}\nv_exp_f32 v{m+2}, v{m+2}\nv_fract_f32 v{Z8+2*h+1}, v{Z8+2*h+1}\nv_fract_f32 v{ZH+2*h+1}, v{ZH+2*h+1}")
    for h in range(2):
        for r in (Z1, Z8, ZH): a(f"v_cos_f32 v{r+2*h}, v{r+2*h+1}\nv_sin_f32 v{r+2*h+1}, v{r+2*h+1}")
    for h in range(2):
        for n, r in enumerate((Z1, Z8, ZH)): a(f"v_mul_f32 v{r+2*h}, v{r+2*h}, v{168+4*h+n}\nv_mul_f32 v{r+2*h+1}, v{r+2*h+1}, v{168+4*h+n}")
    def cm1(d, x, y): return f"v_pk_mul_f32 v[{d}:{d+1}], v[{x}:{x+1}], v[{y}:{y+1}] op_sel:[0,0] op_sel_hi:[0,1]"
    def cm2(d, x, y): return f"v_pk_fma_f32 v[{d}:{d+1}], v[{x}:{x+1}], v[{y}:{y+1}], v[{d}:{d+1}] op_sel:[1,1,0] op_sel_hi:[1,0,1] neg_lo:[1,0,0]"
    F = {"Q1": Z1, "W1": Z8, "P1": ZH, "Y0": 70}
    H = {}
    nf = [88]; nh = [10]
    def allocF(n): F[n] = nf[0]; nf[0] += 4
    def allocH(n):
        if nh[0] == 52: nh[0] = 164
        H[n] = nh[0]; nh[0] += 2
    rowP = {1: 8, 2: 16, 3: 20, 4: 24, 5: 26, 6: 28, 7: 30}; rowP.update({i: 32 + i - 8 for i in range(8, 17)})
    rowof = {f"Y{k}": k for k in range(16)}
    rowof.update({f"Q{j}": 16 + j for j in range(1, 8)}); rowof.update({f"P{i}": 16 + rowP[i] for i in range(1, 17)}); rowof["R4"] = 16 + 25
    wr = lambda r, row: f"ds_write_b64 v{V_TW}, v[{r}:{r+1}] offset:{row*RS}"
    def cvt(n):
        if n == "W4": return []
        allocH(n); v = F[n]; t = H[n]
        return [f"v_cvt_pk_f16_f32 v{t}, v{v}, v{v+1}", f"v_cvt_pk_f16_f32 v{t+1}, v{v+2}, v{v+3}"] + ([wr(t, rowof[n])] if n in rowof else [])
    levels = [[("Q2", "Q1", "Q1"), ("W2", "W1", "W1"), ("P2", "P1", "P1")],
              [("Q3", "Q2", "Q1"), ("Q4", "Q2", "Q2"), ("W3", "W2", "W1"), ("W4", "W2", "W2"), ("P3", "P2", "P1"), ("P4", "P2", "P2")],
              [("Q5", "Q4", "Q1"), ("Q6", "Q4", "Q2"), ("Q7", "Q4", "Q3"), ("Y4", "Y0", "W4"), ("P8", "P4", "P4"), ("R4", "P4", "Q4")],
              [("Y8", "Y4", "W4"), ("P12", "P8", "P4"), ("P16", "P8", "P8")], [("Y12", "Y8", "W4")]]
    prods = [(f"Y{4*x}", f"W{b}", 4 * x + b) for x in range(4) for b in (1, 2, 3)]
    prods += [(f"P{4*x}", f"P{b}", 16 + rowP[4 * x + b]) for x in (1, 2, 3) for b in (1, 2, 3)]
    prods += [("P1", f"Q{j}", 16 + 8 + j) for j in range(1, 8)] + [(f"P{i}", f"Q{j}", 16 + rowP[i] + j // 2) for i in (2, 3) for j in (2, 4, 6)]
    prods += [("R4", f"P{b}", 16 + rowP[4 + b] + 1) for b in (1, 2, 3)]
    TR = list(range(168, 184, 2)) + list(range(192, 222, 2)); tn = [0]
    seq = [o for n in ("Y0", "Q1", "P1", "W1") for o in cvt(n)]
    left = list(prods)
    def take_prods(limit):
        grp = [p for p in left if p[0] in H and p[1] in H][:limit]
        st = []; tr = []
        for p in grp: left.remove(p); tr.append(TR[tn[0] % len(TR)]); tn[0] += 1
        for t, (x, y, row) in zip(tr, grp): st += [f"v_pk_mul_f16 v{t+h}, v{H[x]+h}, v{H[y]+h} op_sel:[0,0] op_sel_hi:[0,1]" for h in range(2)]
        for t, (x, y, row) in zip(tr, grp): st += [f"v_pk_fma_f16 v{t+h}, v{H[x]+h}, v{H[y]+h}, v{t+h} op_sel:[1,1,0] op_sel_hi:[1,0,1] neg_lo:[1,0,0]" for h in range(2)] + [wr(t, row)]
        return st
    for lv in levels:
        seq += take_prods(KO["PL"])
        for d, x, y in lv: allocF(d)
        for d, x, y in lv: seq += [cm1(F[d], F[x], F[y]), cm1(F[d] + 2, F[x] + 2, F[y] + 2)]
        for d, x, y in lv: seq += [cm2(F[d], F[x], F[y]), cm2(F[d] + 2, F[x] + 2, F[y] + 2)]
        for d, x, y in lv: seq += cvt(d)
    while left: seq += take_prods(4)
    assert nf[0] <= 164 and nh[0] <= 168
    merged = []; wq = []; since = 99
    for o in seq:
        if o.startswith("ds_"): wq.append(o)
        else:
            merged.append(o); since += 1
        if wq and (since >= KO["WSP"] or len(wq) > 16): merged.append(wq.pop(0)); since = 0
    merged += wq
    n = len(merged); steps = [merged[k * n // 16:(k + 1) * n // 16] for k in range(16)]
    dmaq = []
    def chk_dma(now=True):
        a("s_mov_b32 s37, 0\nKF_poll:\ns_waitcnt vmcnt(0)\nv_cmp_ne_u32 vcc, s14, v4\ns_add_u32 s37, s37, 1\ns_cbranch_vccz KF_pok\ns_cmp_gt_u32 s37, 20000\ns_cbranch_scc1 KF_pok")
        a(f"buffer_load_dword v4, v{V_FP}, s[8:11], s34 offen sc1\ns_branch KF_poll\nKF_pok:\ns_mov_b32 m0, s39\ns_barrier")
        rt_mark(a, 76)
        for k in range(8):
            dmaq.append(("s_add_u32 m0, m0, 4096\ns_add_u32 s38, s38, 4096\n" if k == 4 else "") + f"buffer_load_dwordx4 v{V_L16}, s[8:11], s38 offen offset:{1024*(k%4)} sc1 lds")
        while now and dmaq: a(dmaq.pop(0))
    for k, st in enumerate(steps):
        for o in st: a(o)
        if k == KO["PUBK"]:
            rt_mark(a, 80)
            a(f"s_waitcnt vmcnt(0)\ns_barrier\ns_cmp_lg_u32 s7, 0\ns_cbranch_scc1 KF_f1\nbuffer_store_dword v2, v{V_RP}, s[8:11], s43 offen sc1\nKF_f1:")
            rt_mark(a, 82)
        if k == KO["CHKK"]: chk_dma()
        if k == KO["POLLK"]: a(f"buffer_load_dword v4, v{V_FP}, s[8:11], s34 offen sc1")
    assert len(steps) == 16
    a("s_waitcnt lgkmcnt(0)")
    rd = [f"ds_read_b128 a[{4*q}:{4*q+3}], v{V_TR} offset:{64*q}" for q in range(8)]
    for T in range(3): rd += [f"ds_read_b128 a[{32+32*T+4*q}:{35+32*T+4*q}], v{V_TR} offset:{(16+16*T)*RS + 64*q}" for q in range(8)]
    order = []
    for q in range(8): order += [rd[q], rd[8 + q]]
    order += rd[16:]
    for x in order[:14]: a(x)
    order = order[14:]; issued = 14
    cw = [[f"v_mul_f32 v{80+4*T+i}, v60, v{80+4*T+i}" for i in range(4)] + [f"v_cvt_pk_bf16_f32 v{80+4*T+i}, v{80+4*T+2*i}, v{81+4*T+2*i}" for i in range(2)] for T in range(3)]
    cww = [[f"ds_write_b64 v{V_C0}, v[80:81]"], [f"ds_write_b32 v{V_C1}, v84 offset:512", f"ds_write_b32 v{V_C2}, v85 offset:512"],
           [f"ds_write_b16 v{V_C3}, v88 offset:1024", f"ds_write_b16_d16_hi v{V_C3}, v88 offset:1056", f"ds_write_b16 v{V_C3}, v89 offset:1088", f"ds_write_b16_d16_hi v{V_C3}, v89 offset:1120"]]
    for T in range(3):
        for q in range(8):
            needn = 2 * q + 2 if T == 0 else 16 + 8 * (T - 1) + q + 1
            a(f"s_waitcnt lgkmcnt({issued - needn})")
            a(f"v_mfma_f32_16x16x32_f16 v[{80+4*T}:{83+4*T}], a[{32+32*T+4*q}:{35+32*T+4*q}], a[{4*q}:{4*q+3}], {'0' if q == 0 else f'v[{80+4*T}:{83+4*T}]'}")
            for _ in range(2 if T == 0 else 1):
                if order: a(order.pop(0)); issued += 1
            if T >= 1 and q >= 5: a(cw[T - 1].pop(0)); a(cw[T - 1].pop(0))
    rt_mark(a, 74)
    if KO['CHKK'] == 16: chk_dma(False)
    else: a("s_barrier")
    def dm():
        if dmaq: a(dmaq.pop(0))
    dm(); dm()
    a(f"ds_write_b32 v{V_Z}, v52\nds_write_b32 v{V_PZ}, v52")
    for x in cww[0] + cww[1]: a(x)
    a(f"ds_read_b32 v24, v{V_R0}\nds_read2_b32 v[26:27], v{V_R0} offset0:1 offset1:2\nds_read_b32 v25, v{V_R1} offset:512\nds_read2_b32 v[28:29], v{V_R1} offset0:129 offset1:130")
    dm()
    a("v_cmp_eq_u32 vcc, 0, v1\nv_lshlrev_b32 v10, 16, v65")
    for x in cw[2] + cww[2]: a(x)
    for k in range(2): a(f"ds_read2_b32 v[{30+2*k}:{31+2*k}], v{V_P5} offset0:{192+32*k} offset1:{193+32*k}")
    for k in range(4): a(f"ds_read2_b32 v[{34+2*k}:{35+2*k}], v{V_P6} offset0:{16*k} offset1:{16*k+1}")
    dm()
    a("s_waitcnt lgkmcnt(10)")
    a("v_perm_b32 v44, v24, v26, s44\nv_alignbit_b32 v45, v26, v26, 16\nv_perm_b32 v46, v26, v27, s44\nv_alignbit_b32 v47, v27, v27, 16")
    a(f"ds_write_b128 v{V_P4}, v[44:47] offset:64")
    a("v_perm_b32 v49, v28, v28, s45\nv_perm_b32 v48, v25, v28, s44\nv_alignbit_b32 v50, v28, v28, 16\nv_perm_b32 v51, v28, v29, s44\nv_cndmask_b32 v48, v49, v48, vcc")
    a(f"ds_write_b128 v{V_P4}, v[48:51] offset:{64+1024}")
    dm()
    for k in range(6):
        a(f"s_waitcnt lgkmcnt(7)")
        sl = V_SEL + (4 if k < 2 else 0); d = 92 + 4 * k
        for o in range(4): a(f"v_perm_b32 v{d+o}, v{31+2*k}, v{30+2*k}, v{sl+o}")
        a(f"ds_write_b128 v{V_P4}, v[{d}:{d+3}] offset:{64+2048+1024*k}")
        dm()
    if KO['CHKK'] == 17: chk_dma()
    ACC = 192; SR = 64; XR = 96; TT = 128
    fs = lambda rho: 64 * (rho % 3)
    def areads(rho):
        r = 2 * rho; AF = fs(rho); o = []
        for q in range(8):
            o.append(f"ds_read2_b32 a[{AF+4*q}:{AF+4*q+1}], v{VA+q} offset0:{16*r+6} offset1:{16*r+4}")
            o.append(f"ds_read2_b32 a[{AF+4*q+2}:{AF+4*q+3}], v{VA+q} offset0:{16*r+2} offset1:{16*r}")
        return o
    def breads(rho):
        BF = fs(rho) + 32
        return [f"ds_read_b128 a[{BF+4*q}:{BF+4*q+3}], v{VB+rho%4} offset:{4096*q + 2048*(1-rho//4)}" for q in range(8)]
    for x in areads(0) + areads(1)[:KO['AR1']]: a(x)
    w2_setup(a, False)
    a("; @warm1")
    a("s_waitcnt vmcnt(0)\ns_barrier")
    rt_mark(a, 88)
    def unp(d, s): return [f"v_lshlrev_b32 v{d}, 16, v{s}", f"v_and_b32 v{d+1}, s12, v{s}"]
    prel = []
    for p0 in range(0, 16, 4):
        g = [unp(SR + 2 * p, 16 + p) + [f"v_pk_mul_f32 v[{SR+2*p}:{SR+2*p+1}], v[{SR+2*p}:{SR+2*p+1}], v[10:11] op_sel_hi:[1,0]", f"v_cvt_pk_bf16_f32 v{SR+2*p+1}, v{SR+2*p}, v{SR+2*p+1}"] + unp(SR + 2 * p, SR + 2 * p + 1) + unp(XR + 2 * p, 32 + p) for p in range(p0, p0 + 4)]
        for st in range(8):
            for e in range(4): prel.append(g[e][st])
    def post(c):
        T = TT + 8 * c; y = ACC + 4 * c
        o = [f"v_cvt_pk_bf16_f32 v{T+1}, v{y}, v{y+1}", f"v_cvt_pk_bf16_f32 v{T+3}, v{y+2}, v{y+3}"]
        for src in (SR, XR):
            o += unp(T, T + 1) + unp(T + 2, T + 3)
            o += [f"v_pk_add_f32 v[{T}:{T+1}], v[{T}:{T+1}], v[{src+4*c}:{src+4*c+1}]", f"v_pk_add_f32 v[{T+2}:{T+3}], v[{T+2}:{T+3}], v[{src+4*c+2}:{src+4*c+3}]"]
            if src == SR: o += [f"v_cvt_pk_bf16_f32 v{T+1}, v{T}, v{T+1}", f"v_cvt_pk_bf16_f32 v{T+3}, v{T+2}, v{T+3}"]
        o += [f"v_cvt_pk_bf16_f32 v{T+4}, v{T}, v{T+1}", f"v_cvt_pk_bf16_f32 v{T+5}, v{T+2}, v{T+3}", f"ds_write_b64 v{V_HS}, v[{T+4}:{T+5}] offset:{512*c}"]
        return o
    def mf(rho, c, q):
        AF = fs(rho); BF = AF + 32
        src = "0" if (rho == 0 and q == 0) else f"v[{ACC+4*c}:{ACC+4*c+3}]"
        a(f"v_mfma_f32_16x16x32_bf16 v[{ACC+4*c}:{ACC+4*c+3}], a[{AF+4*q}:{AF+4*q+3}], a[{BF+4*(c-q)}:{BF+4*(c-q)+3}], {src}")
    rq = [(("B", 0, q), x) for q, x in enumerate(breads(0))]
    for rho in range(1, 8):
        ar = areads(rho); br = breads(rho)
        for q in range(8):
            rq.append((("B", rho, q), br[q]))
            for h in range(2):
                if not (rho == 1 and 2 * q + h < KO['AR1']): rq.append((("A", rho, q), ar[2 * q + h]))
        if rho == 1:
            rq += [(("E", 0, 0), f"ds_read_b64 v[{16+2*c}:{17+2*c}], v{V_EU} offset:{4096*c}") for c in range(8)]
            rq += [(("E", 0, 0), f"ds_read_b64 v[{32+2*c}:{33+2*c}], v{V_EX} offset:{4096*c}") for c in range(8)]
    ML = [(rho, c, q) for rho in range(6) for c in range(8) for q in range(c + 1)] + [(rho, c, q) for c in range(8) for rho in (6, 7) for q in range(c + 1)]
    out = []
    def lwait(tags):
        idx = [k for k, t in enumerate(out) if t in tags]
        if idx:
            keep = min(KO["LW"], len(out) - 1 - idx[-1])
            a(f"s_waitcnt lgkmcnt({keep})"); del out[:len(out) - keep]
            return 1
        return 0
    tw = ["buffer_load_dword v58, v59, s[52:55], s47 offen", f"global_load_dword v55, v{V_L16}, s[56:57]"]
    if KO["W2D"]: tw.append(f"s_xor_b32 s62, s2, 4\ns_sub_u32 s62, s62, s2\ns_mul_i32 s62, s62, {5184*32}\ns_add_u32 s47, s47, s62\nbuffer_load_dword v57, v59, s[52:55], s47 offen")
    vq = [(4, tw[0]), (8, tw[1])] + [(12, x) for x in tw[2:]]
    for _ in range(8): t, x = rq.pop(0); a(x); out.append(t)
    a("s_cmp_lg_u32 s2, 0\ns_cbranch_scc1 KF_nb")
    a(f"s_mov_b32 s6, {NONCE}\nbuffer_store_dword v2, v52, s[8:11], s6 offen\nKF_nb:")
    pq = []; credit = 0.0; pre_ok = False
    for n, (rho, c, q) in enumerate(ML):
        assert not any(t in (("A", rho, q), ("B", rho, c - q)) for t, _ in rq), (n, rho, c, q)
        nxt = ML[n:n + 3]
        k = 0
        if any(t in out for t in (("A", rho, q), ("B", rho, c - q))):
            lwait([tt for (r2, c2, q2) in (nxt if n > 40 else nxt[:1]) for tt in (("A", r2, q2), ("B", r2, c2 - q2))])
        mf(rho, c, q)
        credit = min(credit + (1.0 if n < 60 else KO["RR"] / 100.0), 2.0)
        if rq and credit >= 1 and (rq[0][0][0] == "E" or rq[0][0][1] - 3 < min(rho, 6) - (0 if n < 216 else 0) and (rq[0][0][1] < 3 or n >= 36 * (rq[0][0][1] - 2))):
            t, x = rq.pop(0); a(x); out.append(t); credit -= 1; k += 1
        if not pre_ok and n >= 70: k += lwait([("E", 0, 0)]); pre_ok = True
        if vq and n >= vq[0][0]:
            a(vq.pop(0)[1]); k = 2
        while k < 2 and pq and pq[0][0] <= n and not rq:
            x = pq.pop(0)[1]; a(x); k += 1
            if x.startswith("ds_"): out.append(("W", 0, 0))
        while k < 2 and pre_ok and prel: a(prel.pop(0)); k += 1
        if rho == 7 and q == c:
            assert not prel
            pq += [(n + 3, o) for o in post(c)]
    assert not rq and not vq
    rt_mark(a, 78)
    for _, o in pq: a(o)
    a("s_waitcnt lgkmcnt(0)\ns_barrier")
    for m in range(4): a(f"ds_read_b64_tr_b16 v[{32+4*m}:{33+4*m}], v{V_FT} offset:{256*m}\nds_read_b64_tr_b16 v[{34+4*m}:{35+4*m}], v{V_FT} offset:{256*m+32}")
    for m in range(4):
        a(f"s_waitcnt lgkmcnt({6-2*m})\nbuffer_store_dwordx4 v[{32+4*m}:{35+4*m}], v{V_FS}, s[8:11], s42 offen{SC}")
        if m < 3: a(f"s_add_u32 s42, s42, {4*36864}")
    rt_end(a, 0, [70, 72, 80, 82, 74, 76, 88, 78], wait=not FUSE)
    a(END)
    a("KF_aux:")
    a("s_sub_u32 s3, s2, 144\nv_mov_b32 v108, 0\nv_mov_b32 v109, s14")
    a(f"s_waitcnt vmcnt(0) lgkmcnt(0)\ns_barrier\ns_cmp_lg_u32 s7, 0\ns_cbranch_scc1 KF_f2\nbuffer_store_dword v109, v{V_RP}, s[8:11], s43 offen sc1\nKF_f2:\nv_mov_b32 v53, 0\nv_mov_b32 v54, 0\nv_mov_b32 v55, 0")
    a("s_lshr_b32 s3, s3, 3\ns_lshr_b32 s6, s7, 1\ns_lshl_b32 s13, s3, 1\ns_add_u32 s13, s13, s6\ns_mul_i32 s14, s13, 43\ns_lshr_b32 s14, s14, 7\ns_mul_i32 s15, s14, 3\ns_sub_u32 s15, s13, s15")
    a("s_and_b32 s6, s2, 3\ns_mul_i32 s6, s6, 18\ns_add_u32 s14, s14, s6\ns_bfe_u32 s6, s2, 0x10002\ns_mul_i32 s6, s6, 9\ns_add_u32 s14, s14, s6")
    a(f"s_cmp_lt_u32 s13, 27\ns_cselect_b32 s18, {576*9216}, 0\ns_cselect_b32 s22, {AUG}, s10\ns_mov_b32 s16, s48\ns_mov_b32 s17, s49\ns_mov_b32 s19, 0x20000")
    a("v_bfe_u32 v3, v0, 3, 4\nv_and_b32 v2, 7, v0\nv_mul_u32_u24 v3, 9216, v3\nv_lshl_add_u32 v3, v2, 4, v3")
    a(f"s_lshl_b32 s20, s14, 7\ns_min_u32 s21, s20, {71*128}\nv_lshl_add_u32 v4, v1, 1, s21\ns_mul_i32 s21, s15, {192*9216}\ns_add_u32 s20, s20, s21\ns_mov_b32 s21, {16*9216}")
    for k in range(12):
        a(f"buffer_load_dwordx4 v[{16+4*k}:{19+4*k}], v3, s[16:19], s20 offen\ns_add_u32 s20, s20, s21")
    a("global_load_ushort v5, v4, s[50:51]")
    a(f"v_min_u32 v102, 47, v0\nv_lshlrev_b32 v102, 7, v102\ns_mul_i32 s6, s3, 6144\ns_add_u32 s6, s6, 0x3800\nv_add_u32 v103, s6, v102\nglobal_load_dword v110, v103, s[40:41]\nglobal_load_dword v111, v{V_L16}, s[56:57]")
    w2_setup(a, True); a("buffer_load_dword v112, v102, s[52:55], s47 offen")
    for k in range(12):
        a(f"s_waitcnt vmcnt({15-k})")
        for j in range(4):
            d = 8 + 2 * j if k == 0 else 90 + 2 * j
            a(f"v_lshlrev_b32 v{d}, 16, v{16+4*k+j}\nv_and_b32 v{d+1}, s12, v{16+4*k+j}")
        if k:
            for j in range(4): a(f"v_pk_add_f32 v[{8+2*j}:{9+2*j}], v[{8+2*j}:{9+2*j}], v[{90+2*j}:{91+2*j}]")
    for j in range(8): a(f"v_add_f32_dpp v{8+j}, v{8+j}, v{8+j} row_ror:8 row_mask:0xf bank_mask:0xf")
    a("v_lshrrev_b32 v3, 4, v0\nv_lshlrev_b32 v3, 8, v3\nv_lshl_add_u32 v3, v2, 5, v3\ns_lshl_b32 s6, s7, 10\nv_lshl_add_u32 v2, v1, 2, s6")
    a("ds_write_b128 v3, v[8:11]\nds_write_b128 v3, v[12:15] offset:16")
    a("s_waitcnt lgkmcnt(0)\ns_barrier")
    a("s_bitcmp1_b32 s7, 0\ns_cbranch_scc1 KF_fin")
    for k in range(4): a(f"ds_read2st64_b32 v[{16+2*k}:{17+2*k}], v2 offset0:{2*k} offset1:{2*k+1}")
    a("s_lshl_b32 s13, s14, 10\ns_add_u32 s13, s13, s22\ns_lshl_b32 s6, s15, 2\ns_add_u32 s6, s6, s13\ns_waitcnt lgkmcnt(0)")
    for st in (2, 1):
        for k in range(st): a(f"v_pk_add_f32 v[{16+2*k}:{17+2*k}], v[{16+2*k}:{17+2*k}], v[{16+2*(k+st)}:{17+2*(k+st)}]")
    a("v_add_f32 v16, v16, v17")
    a("v_cvt_pk_bf16_f32 v17, v16, v16\nv_and_b32 v18, s12, v17\nv_sub_f32 v18, v16, v18\nv_cvt_pk_bf16_f32 v17, v16, v18")
    a(f"buffer_store_dword v17, v{V_L16}, s[8:11], s6 offen{SC}\ns_cmp_lg_u32 s15, 0\ns_cbranch_scc1 KF_nb1\ns_waitcnt vmcnt(4)\nbuffer_store_dword v5, v{V_L16}, s[8:11], s13 offen offset:12{SC}\nKF_nb1:")
    rt_end(a, 0, [70, 72, 72, 72, 72], wait=not FUSE)
    a("KF_fin:")
    a(f"s_add_u32 s43, s43, {FLB - FLA & 0xffffffff}\ns_waitcnt vmcnt(0) lgkmcnt(0)\ns_barrier\ns_cmp_lg_u32 s7, 0\ns_cbranch_scc1 KF_f3\nbuffer_store_dword v109, v{V_RP}, s[8:11], s43 offen sc1\ns_waitcnt vmcnt(0)\nKF_f3:\ns_barrier")
    a("; @warm2")
    a(f"{END}\nKF_end:\ns_endpgm")
    return dict(name="kf_kernel", vgpr=512, accum=256, sgpr=102, grid=256, block=256, lds=KF_LDS)
```

```python
UT   = 0x0000000
XT   = 0x0240000
KC   = 0x0480000
HP8  = 0x0580000
AUG  = 0x07C0000
FLG  = 0x2800000
H1F  = 0x0800000
PART = 0x1A00000
WSZ  = 0x4000000
UX   = 0x0000000
NONCE = 0x2900000
FLA  = 0x2910000
FLB  = 0x2908000
STX  = 0x2920000
LOG2E = 0x3fb8aa3b

import os
STAMP = bool(os.environ.get('STAMP'))
RT = WSZ - 524288 - 262144
def rt_begin(a, r=100):
    if STAMP: a(f"s_memrealtime s[{r}:{r+1}]")
def rt_mark(a, r):
    if STAMP: a(f"s_memrealtime s[{r}:{r+1}]")
FUSE = int(os.environ.get("FUSE", "1"))
KNAME = "sequential_preLN__ssm_conv_s4d__dense_activation_squared_relu__prompt_kernel"
def rt_end(a, kern, regs, tmpv=2, wait=True):
    if not STAMP: return
    a(("s_waitcnt vmcnt(0)\n" if wait else "") + "s_memrealtime s[84:85]\ns_waitcnt lgkmcnt(0)")
    if os.environ.get("DBG"):
        n = rt_end.n = getattr(rt_end, "n", 0) + 1
        a(f"s_cmp_lg_u32 s2, 3\ns_cbranch_scc1 DBG{n}\ns_load_dwordx2 s[86:87], s[0:1], 104\ns_waitcnt lgkmcnt(0)")
        for k, r in enumerate(regs + [84]):
            a(f"v_mov_b32 v{tmpv}, s{r}\nv_mov_b32 v{tmpv+1}, {4*(k + (10 if kern else 0))}\nglobal_store_dword v{tmpv+1}, v{tmpv}, s[86:87]")
        a(f"DBG{n}:")
        return
    for k, r in enumerate(regs + [84]): a(f"v_writelane_b32 v{tmpv}, s{r}, {k}")
    a(f"s_lshl_b32 s86, s2, 6\ns_add_u32 s86, s86, {RT + kern*65536}\nv_mbcnt_lo_u32_b32 v{tmpv+1}, -1, 0\nv_lshlrev_b32 v{tmpv+1}, 2, v{tmpv+1}\ns_mov_b64 exec, 0xffff")
    a(f"buffer_store_dword v{tmpv}, v{tmpv+1}, s[8:11], s86 offen\ns_mov_b64 exec, -1")
```

```python
import sys
sys.path.insert(0, "work")
from build import build
from layout import FUSE, KNAME
import kf, k3
def fused(a):
    i1 = kf.gen_kf(a); i2 = k3.gen_k3(a)
    i2.update(name=KNAME, lds=max(i1["lds"], i2["lds"]))
    return i2
build([fused] if FUSE else [kf.gen_kf, k3.gen_k3], sys.argv[1] if len(sys.argv) > 1 else "full.s")
```
